```python
import torch

def _softmax(x, axis=-1):
    return torch.softmax(x, dim=axis)
def _gelu(x):
    return torch.nn.functional.gelu(x, approximate="tanh")
def _silu(x):
    return torch.nn.functional.silu(x)
def _sigmoid(x):
    return torch.sigmoid(x)
def _layernorm(x, axis=-1, eps=1e-5):
    m = x.mean(dim=axis, keepdim=True)
    v = x.var(dim=axis, keepdim=True, unbiased=False)
    return (x - m) / torch.sqrt(v + eps)
def _scatter_add(tgt, idx, src, axis=0):
    return tgt.clone().index_add_(axis, idx, src)
def _segment_sum(src, seg, n):
    out = torch.zeros((n,) + src.shape[1:], dtype=src.dtype)
    return out.index_add_(0, seg, src)
def _pad(x, pw):
    flat = tuple(v for pair in reversed(pw) for v in pair)
    return torch.nn.functional.pad(x, flat)

kernel_name = 'parallel_sum__sliding_block_cached__glu_gated_reglu__decode'

def setup_inputs():

    _w = (lambda a: (lambda t: t.to(torch.bfloat16) if t.is_floating_point() else t)(torch.as_tensor(a)))
    def _A_setup():
        B, Sq, D = 2, 1, 576
        Hq, Hkv, Sk, Dh = 32, 16, 8192, 128
        assert Hq % Hkv == 0, (Hq, Hkv)
        return {
            "x": _w((lambda *s: torch.randn(*s, dtype=torch.bfloat16) * 0.05)(B, Sq, D)),
            "k_cache": _w((lambda *s: torch.randn(*s, dtype=torch.bfloat16) * 1.6)(B, Hkv, Sk, Dh)),
            "v_cache": _w((lambda *s: torch.randn(*s, dtype=torch.bfloat16) * 0.8)(B, Hkv, Sk, Dh)),
            "wq": _w((lambda *s: torch.randn(*s, dtype=torch.bfloat16) * 1.6)(D, Hq * Dh) * (D ** -0.5)),
            "wo": _w((lambda *s: torch.randn(*s, dtype=torch.bfloat16) * 0.8)(Hq * Dh, D) * ((Hq * Dh) ** -0.5)),
        }
    _A_in = _A_setup()

    def _B_setup():
        B, S, D, F = 2, 1, 576, 4608
        return {
            "x": _w((lambda *s: torch.randn(*s, dtype=torch.bfloat16) * 0.05)(B, S, D)),
            "W_gate": _w((lambda *s: torch.randn(*s, dtype=torch.bfloat16) * 0.4)(D, F) * (2.0 / D) ** 0.5),
            "W_up": _w((lambda *s: torch.randn(*s, dtype=torch.bfloat16) * 0.4)(D, F) * (2.0 / D) ** 0.5),
            "W_down": _w((lambda *s: torch.randn(*s, dtype=torch.bfloat16) * 0.4)(F, D) * (1.0 / F) ** 0.5),
        }
    _B_in = _B_setup()

    return {
        "A_x": _A_in["x"],
        "A_k_cache": _A_in["k_cache"],
        "A_v_cache": _A_in["v_cache"],
        "A_wq": _A_in["wq"],
        "A_wo": _A_in["wo"],
        "B_x": _B_in["x"],
        "B_W_gate": _B_in["W_gate"],
        "B_W_up": _B_in["W_up"],
        "B_W_down": _B_in["W_down"],
    }

def reference(A_x, A_k_cache, A_v_cache, A_wq, A_wo, B_x, B_W_gate, B_W_up, B_W_down):
    def _A_ref(x, k_cache, v_cache, wq, wo):
        B, Sq, D = x.shape
        Hq, Dh = 32, 128
        Hkv, Sk = k_cache.shape[1], k_cache.shape[2]
        W = min(4096, max(256, Sk // 4))
        rep = Hq // Hkv
        q = (lambda x, *d: x.permute(*d))((x @ wq).reshape(B, Sq, Hq, Dh), 0, 2, 1, 3)
        k = (lambda x, n, axis: torch.repeat_interleave(x, n, dim=axis))(k_cache[:, :, Sk - W:, :], rep, axis=1)
        v = (lambda x, n, axis: torch.repeat_interleave(x, n, dim=axis))(v_cache[:, :, Sk - W:, :], rep, axis=1)
        scores = torch.einsum("bhqd,bhkd->bhqk", q, k) * (Dh ** -0.5)
        p = _softmax(scores, axis=-1)
        o = torch.einsum("bhqk,bhkd->bhqd", p, v)
        return (lambda x, *d: x.permute(*d))(o, 0, 2, 1, 3).reshape(B, Sq, Hq * Dh) @ wo

    def _B_ref(x, W_gate, W_up, W_down):
        gate = torch.einsum("bsd,df->bsf", x, W_gate)
        up = torch.einsum("bsd,df->bsf", x, W_up)
        gate = gate * (lambda x, dt: x.to(dt))(gate > 0, gate.dtype)
        h = gate * up
        return torch.einsum("bsf,fd->bsd", h, W_down)

    x = A_x
    xn = _layernorm(x, axis=-1)
    return x + _A_ref(xn, A_k_cache, A_v_cache, A_wq, A_wo) + _B_ref(xn, B_W_gate, B_W_up, B_W_down)
```

```python
import re

TRANS = ("v_exp_f32", "v_log_f32", "v_rcp_f32", "v_rsq_f32", "v_sqrt_f32", "v_sin_f32", "v_cos_f32",
         "v_rcp_iflag_f32")
NO_DEST_S = ("s_cmp", "s_cbranch", "s_waitcnt", "s_barrier", "s_nop", "s_setprio", "s_endpgm", "s_branch",
             "s_sleep", "s_bitcmp", "s_sethalt", "s_setreg")

_reg_re = re.compile(r"^(-|abs\()?([vsa])(\d+)\)?$")
_rng_re = re.compile(r"^(-|abs\()?([vsa])\[(\d+):(\d+)\]\)?$")


def regs_of(op):
    op = op.strip()
    if op.startswith("|") and op.endswith("|"):
        op = op[1:-1]
    m = _reg_re.match(op)
    if m:
        return {(m.group(2), int(m.group(3)))}
    m = _rng_re.match(op)
    if m:
        return {(m.group(2), i) for i in range(int(m.group(3)), int(m.group(4)) + 1)}
    if op == "vcc":
        return {("s", "vcc_lo"), ("s", "vcc_hi")}
    if op in ("vcc_lo", "vcc_hi"):
        return {("s", op)}
    if op == "exec":
        return {("s", "exec_lo"), ("s", "exec_hi")}
    if op in ("exec_lo", "exec_hi"):
        return {("s", op)}
    if op == "m0":
        return {("s", "m0")}
    return set()


def mfma_passes(mn):
    if "32x32x16" in mn or "32x32x8" in mn or "32x32x32_i8" in mn:
        return 8
    if "16x16x32" in mn or "16x16x16" in mn:
        return 4
    if "16x16x4_f32" in mn:
        return 8
    if "32x32x2_f32" in mn:
        return 16
    if "4x4x4" in mn:
        return 2
    raise ValueError(mn)


class Ins:
    __slots__ = ("text", "mn", "kind", "rd", "wr", "dpp", "trans", "passes", "srcc", "srcab", "nstates",
                 "store_data", "lds_dma", "sgemm", "lanesel", "permlane", "readlane", "maskrd")

    def __init__(self, text):
        self.text = text
        t = text.split(";")[0].strip()
        parts = t.split(None, 1)
        mn = parts[0]
        self.mn = mn
        rest = parts[1] if len(parts) > 1 else ""
        ops, depth, cur = [], 0, ""
        for ch in rest:
            if ch in "[(":
                depth += 1
            if ch in "])":
                depth -= 1
            if ch == "," and depth == 0:
                ops.append(cur.strip())
                cur = ""
            else:
                cur += ch
        if cur.strip():
            ops.append(cur.strip())
        mods = ""
        if ops:
            last = ops[-1].split(None, 1)
            ops[-1] = last[0]
            mods = last[1] if len(last) > 1 else ""
        self.rd, self.wr = set(), set()
        self.dpp = ("quad_perm" in mods or "row_" in mods or "wave_" in mods)
        self.trans = any(mn.startswith(x) for x in TRANS)
        self.passes = 0
        self.srcc = set()
        self.srcab = set()
        self.nstates = 1
        self.store_data = set()
        self.lds_dma = False
        self.sgemm = False
        self.lanesel = set()
        self.permlane = mn.startswith("v_permlane")
        self.readlane = mn.startswith("v_readlane") or mn.startswith("v_readfirstlane")
        R = [regs_of(o) for o in ops]
        if mn == "s_nop":
            self.kind = "nop"
            self.nstates = int(ops[0], 0) + 1
            return
        if mn.startswith("v_mfma"):
            self.kind = "mfma"
            self.passes = mfma_passes(mn)
            self.sgemm = mn.endswith("_f32") and ("x4_f32" in mn or "x2_f32" in mn)
            self.wr = set(R[0])
            self.srcab = R[1] | R[2]
            self.srcc = set(R[3])
            self.rd = self.srcab | self.srcc
            return
        if mn.startswith("v_"):
            self.kind = "valu"
            if self.permlane and "swap" in mn:
                self.wr = R[0] | R[1]
                self.rd = R[0] | R[1]
                return
            ndest = 1
            if "_co_" in mn or mn.startswith("v_mad_u64_u32") or mn.startswith("v_div_scale"):
                ndest = 2
            for r in R[:ndest]:
                self.wr |= r
            for r in R[ndest:]:
                self.rd |= r
            if mn.startswith("v_cmpx"):
                self.wr |= regs_of("exec")
            if mn.startswith(("v_fmac", "v_mac", "v_dot2c", "v_dot4c", "v_pk_fmac", "v_writelane")):
                self.rd |= R[0]
            if self.dpp:
                self.rd |= R[0]
            if mn.startswith("v_cndmask") and len(ops) == 3:
                self.rd |= regs_of("vcc")
            if mn.startswith(("v_addc_co", "v_subb_co", "v_div_fmas")) and len(ops) < 5:
                self.rd |= regs_of("vcc")
            if mn.startswith(("v_readlane", "v_writelane")):
                self.lanesel = set(R[2])
            return
        if mn.startswith(("buffer_", "global_", "flat_", "scratch_")):
            self.kind = "vmem"
            self.lds_dma = ("lds" in mods.split()) or ("_lds_" in mn)
            if mn.startswith(("buffer_inv", "buffer_wbl2")):
                return
            is_load = "_load" in mn
            if is_load and not self.lds_dma:
                self.wr = set(R[0])
                for r in R[1:]:
                    self.rd |= r
            elif is_load:
                for r in R:
                    self.rd |= r
                self.rd |= regs_of("m0")
            else:
                for r in R:
                    self.rd |= r
                if "atomic" in mn and "sc0" in mods.split():
                    self.wr = set(R[0])
                if "x3" in mn or "x4" in mn:
                    d = R[0] if mn.startswith("buffer_") else R[1]
                    self.store_data = set(d)
            return
        if mn.startswith("ds_"):
            self.kind = "ds"
            if mn.startswith(("ds_read", "ds_bpermute", "ds_permute", "ds_swizzle")) or "_rtn" in mn:
                self.wr = set(R[0])
                for r in R[1:]:
                    self.rd |= r
            else:
                for r in R:
                    self.rd |= r
            return
        if mn.startswith("s_"):
            if mn.startswith(("s_load", "s_buffer_load", "s_memtime", "s_memrealtime")):
                self.kind = "smem"
                self.wr = set(R[0])
                for r in R[1:]:
                    self.rd |= r
                return
            self.kind = "salu"
            if mn.startswith(NO_DEST_S):
                for r in R:
                    self.rd |= r
            else:
                self.wr = set(R[0])
                for r in R[1:]:
                    self.rd |= r
                if "saveexec" in mn:
                    self.wr |= regs_of("exec")
                    self.rd |= regs_of("exec")
            return
        raise ValueError("unknown instruction: " + text)


def need_states(p, c):
    n = 0
    pv = {r for r in p.wr if r[0] in "va"}
    ps = {r for r in p.wr if r[0] == "s"}
    if p.kind == "valu":
        if c.kind == "vmem" and (ps & c.rd):
            n = max(n, 5)
        if c.kind == "valu" and c.dpp and (pv & c.rd):
            n = max(n, 2)
        if c.kind == "valu" and c.dpp and (ps & regs_of("exec")):
            n = max(n, 5)
        if c.kind == "valu" and (ps & c.rd):
            n = max(n, 2)
        if c.kind == "valu" and (ps & c.lanesel):
            n = max(n, 4)
        if c.kind == "valu" and c.mn.startswith("v_div_fmas") and (ps & regs_of("vcc")):
            n = max(n, 4)
        if c.kind == "valu" and c.readlane and (pv & c.rd):
            n = max(n, 1)
        if c.kind == "valu" and (c.readlane or c.permlane) and (ps & regs_of("exec")):
            n = max(n, 4)
        if p.trans and c.kind in ("valu", "mfma") and (pv & c.rd):
            n = max(n, 1)
        if c.kind == "valu" and c.permlane and (pv & c.rd):
            n = max(n, 2)
        if c.kind == "mfma" and (pv & c.rd):
            n = max(n, 2)
        if c.kind == "mfma" and (ps & regs_of("exec")):
            n = max(n, 4)
        if ("sdwa" in p.text or "op_sel" in p.text) and c.kind == "valu" and (pv & (c.rd | c.wr)):
            n = max(n, 1)
    if p.kind == "salu":
        if ("s", "m0") in p.wr and (c.lds_dma or c.mn.endswith("addtid_b32")):
            n = max(n, 1)
    if p.kind == "vmem" and p.store_data:
        if c.kind == "valu" and (p.store_data & c.wr):
            n = max(n, 2)
        elif p.store_data & c.wr:
            n = max(n, 1)
    if p.kind == "mfma":
        P = p.passes
        tab = {2: 0, 4: 1, 8: 2, 16: 3}[P]
        if not p.sgemm:
            if c.kind == "mfma":
                if pv & c.srcc:
                    if c.srcc == pv and c.passes == P and not c.sgemm:
                        n = max(n, [2, 0, 0, 0][tab])
                    else:
                        n = max(n, [4, 6, 10, 18][tab])
                if pv & c.srcab:
                    n = max(n, [5, 8, 12, 20][tab])
                if (pv & c.wr) and not (pv & c.srcc):
                    n = max(n, [5, 8, 12, 20][tab])
            elif c.kind == "valu":
                if pv & (c.rd | c.wr):
                    n = max(n, [5, 8, 12, 20][tab])
                if p.srcc & c.wr:
                    n = max(n, [1, 3, 7, 15][tab])
            elif c.kind in ("vmem", "ds"):
                if pv & (c.rd | c.wr):
                    n = max(n, [5, 8, 12, 20][tab])
        else:
            if c.kind == "mfma":
                if pv & c.srcc:
                    if c.srcc == pv and c.sgemm:
                        n = max(n, [2, 0, 0, 0][tab])
                    elif c.sgemm:
                        n = max(n, [2, 4, 8, 16][tab])
                if pv & c.srcab:
                    n = max(n, [4, 6, 10, 18][tab])
            elif c.kind in ("valu", "vmem", "ds"):
                if pv & (c.rd | c.wr):
                    n = max(n, [4, 6, 10, 18][tab])
    return n


class Asm:
    def __init__(self):
        self.lines = []
        self.hist = []
        self.nops = 0
        self.ninst = 0

    def raw(self, text):
        self.lines.append(text)

    def comment(self, text):
        self.lines.append("    ; " + text)

    def label(self, name):
        self.lines.append(name + ":")

    def fence(self):
        worst = 0
        dist = 0
        for p in reversed(self.hist):
            lim = 0
            if p.kind == "mfma":
                lim = {2: 5, 4: 8, 8: 12, 16: 20}[p.passes]
            elif p.kind == "valu":
                lim = 5 if any(r[0] == "s" for r in p.wr) else 2
            elif p.kind == "vmem" and p.store_data:
                lim = 2
            elif p.kind == "salu" and ("s", "m0") in p.wr:
                lim = 1
            worst = max(worst, lim - dist)
            dist += p.nstates
            if dist > 24:
                break
        self._nop(worst)

    def _nop(self, n):
        while n > 0:
            k = min(n, 16)
            ins = Ins("s_nop %d" % (k - 1))
            self.lines.append("    s_nop %d" % (k - 1))
            self.hist.append(ins)
            self.nops += 1
            n -= k

    def I(self, text):
        for one in text.strip().split("\n"):
            one = one.strip()
            if not one or one.startswith(";"):
                continue
            c = Ins(one)
            need = 0
            dist = 0
            for p in reversed(self.hist):
                k = need_states(p, c)
                if k - dist > need:
                    need = k - dist
                dist += p.nstates
                if dist > 24:
                    break
            if c.kind == "nop":
                pass
            elif need > 0:
                self._nop(need)
            self.lines.append("    " + one)
            self.hist.append(c)
            self.ninst += 1
            if len(self.hist) > 64:
                self.hist = self.hist[-48:]

    def text(self):
        return "\n".join(self.lines) + "\n"


def kernel_header(a, name):
    a.raw(".globl %s" % name)
    a.raw(".p2align 8")
    a.raw(".type %s,@function" % name)
    a.raw("%s:" % name)
    a.hist = []


def kernel_desc(name, nvgpr, nsgpr, accum=None):
    acc = accum if accum is not None else ((nvgpr + 3) // 4) * 4
    return f""".p2align 6
.amdhsa_kernel {name}
  .amdhsa_next_free_vgpr {nvgpr}
  .amdhsa_next_free_sgpr {nsgpr}
  .amdhsa_accum_offset {acc}
  .amdhsa_group_segment_fixed_size 0
  .amdhsa_kernarg_size 96
  .amdhsa_user_sgpr_count 2
  .amdhsa_user_sgpr_kernarg_segment_ptr 1
  .amdhsa_system_sgpr_workgroup_id_x 1
  .amdhsa_float_denorm_mode_32 3
.end_amdhsa_kernel
"""
```

```python
from asmdsl import *

NAME = "parallel_sum__sliding_block_cached__glu_gated_reglu__decode"
HEADER_COMMENTS = """; Kernarg layout for this problem (96 bytes, ptrs only, base s[0:1]):
"""
OFF = dict(x=0, k=8, v=16, wq=24, wo=32, bx=40, wg=48, wu=56, wd=64, out=72, dbg=80, ws=88)
SIZE = dict(x=2304, k=67108864, v=67108864, wq=4718592, wo=4718592, wg=5308416, wu=5308416, wd=5308416,
            out=2304, dbg=256, ws=268435456)


def load_ptr(a, sreg, name):
    a.I(f"s_load_dwordx2 s[{sreg}:{sreg+1}], s[0:1], {OFF[name]}")


def srd(a, s, p, nbytes):
    a.I(f"s_mov_b32 s{s}, s{p}")
    a.I(f"s_and_b32 s{s+1}, s{p+1}, 0xffff")
    a.I(f"s_mov_b32 s{s+2}, {nbytes}")
    a.I(f"s_mov_b32 s{s+3}, 0x20000")


def round_bf16(a, dst, src):
    a.I(f"v_cvt_pk_bf16_f32 v{dst}, v{src}, v{src}")
    a.I(f"v_and_b32 v{dst}, 0xffff0000, v{dst}")


DPPM = "row_mask:0xf bank_mask:0xf"


def allreduce16(a, op, v):
    a.I(f"{op}_dpp v{v}, v{v}, v{v} quad_perm:[1,0,3,2] {DPPM}")
    a.I(f"{op}_dpp v{v}, v{v}, v{v} quad_perm:[2,3,0,1] {DPPM}")
    a.I(f"{op}_dpp v{v}, v{v}, v{v} row_half_mirror {DPPM}")
    a.I(f"{op}_dpp v{v}, v{v}, v{v} row_mirror {DPPM}")


def xrow_reduce(a, op, v, t):
    a.I(f"v_mov_b32 v{t}, v{v}")
    a.I(f"v_permlane16_swap_b32 v{v}, v{t}")
    a.I(f"{op} v{v}, v{v}, v{t}")
    a.I(f"v_mov_b32 v{t}, v{v}")
    a.I(f"v_permlane32_swap_b32 v{v}, v{t}")
    a.I(f"{op} v{v}, v{v}, v{t}")


def allreduce64(a, op, v, t):
    allreduce16(a, op, v)
    xrow_reduce(a, op, v, t)
```

```python
import sys, re
sys.path.insert(0, "gen")
from common import *

def dummy(kn, nt, nld, nwaves=8, lds=False):
    a = Asm()
    kernel_header(a, kn)
    a.I("s_cmp_ge_u32 s2, 256")
    a.I(f"s_cbranch_scc1 {kn}_END")
    for nm, r in (("k", 4), ("v", 6), ("dbg", 30)):
        load_ptr(a, r, nm)
    a.I("s_and_b32 s16, s2, 7")
    a.I("s_lshr_b32 s17, s2, 3")
    a.I("s_lshr_b32 s18, s17, 4")
    a.I("s_lshl_b32 s16, s16, 1")
    a.I("s_add_u32 s16, s16, s18")
    a.I("s_bfe_u32 s18, s17, 0x10003")
    a.I("s_and_b32 s19, s17, 7")
    a.I("s_lshl_b32 s20, s18, 4")
    a.I("s_add_u32 s20, s20, s16")
    a.I("s_lshl_b32 s21, s20, 21")
    per_wave = nld * 1024
    a.I(f"s_mul_i32 s22, s19, {per_wave*nwaves}")
    a.I("s_add_u32 s21, s21, s22")
    a.I("v_and_b32 v1, 63, v0")
    a.I("v_lshrrev_b32 v2, 6, v0")
    a.I("v_lshlrev_b32 v7, 4, v1")
    a.I(f"v_mul_u32_u24 v8, {per_wave}, v2")
    a.I("v_add_u32 v7, v7, v8")
    a.I("s_waitcnt lgkmcnt(0)")
    srd(a, 8, 4, SIZE["k"])
    srd(a, 12, 6, SIZE["v"])
    srd(a, 32, 30, 256)
    reg = 16
    if lds:
        a.I("v_readfirstlane_b32 s40, v2")
        a.I(f"s_mul_i32 s40, s40, 20480")
    k = 0
    for sr in ("s[8:11]", "s[12:15]"):
        for i in range(nld):
            if i % 4 == 0:
                a.I(f"s_add_u32 s25, s21, {i*1024}")
            if lds:
                a.I(f"s_add_u32 s41, s40, {(k % 16)*1024 - (i%4)*1024 + 3072}")
                a.I("s_mov_b32 m0, s41")
                a.I(f"buffer_load_dwordx4 v7, {sr}, s25 offen offset:{(i%4)*1024} {nt} lds")
            else:
                a.I(f"buffer_load_dwordx4 v[{reg}:{reg+3}], v7, {sr}, s25 offen offset:{(i%4)*1024} {nt}")
                reg += 4
            k += 1
    a.I("s_waitcnt vmcnt(0)")
    a.I("v_mov_b32 v11, 0")
    for r in range(16, reg):
        a.I(f"v_xor_b32 v11, v11, v{r}")
    a.I("v_cmp_eq_u32 vcc, 0x13572468, v11")
    a.I("s_and_saveexec_b64 s[46:47], vcc")
    a.I(f"s_cbranch_execz {kn}_END")
    a.I("v_mov_b32 v3, 0")
    a.I("buffer_store_dword v11, v3, s[32:35], 0 offen offset:24")
    a.label(f"{kn}_END")
    a.I("s_endpgm")
    return a.text(), kernel_desc(kn, max(reg, 32), 80)

base = open("v0_ntkv.s").read()

def make(path, extra_launch, kernels):
    s = base
    lines = s.split("\n")
    idx = max(i for i, l in enumerate(lines) if l.startswith("; @launch"))
    lines[idx+1:idx+1] = extra_launch
    s = "\n".join(lines)
    code = "".join(k[0] for k in kernels)
    desc = "".join(k[1] for k in kernels)
    s = s.replace('.section .rodata,"a"', code + '.section .rodata,"a"')
    s = s.rstrip() + "\n" + desc
    open(path, "w").write(s)

make("d_base.s", [], [])
make("d_comb8.s", ["; @launch kernel=comb_kernel grid=(64,1,1) block=(128,1,1) lds=0"] * 8, [])
make("d_snt.s", ["; @launch kernel=snt_kernel grid=(256,1,1) block=(512,1,1) lds=0"], [dummy("snt_kernel", "nt", 14)])
make("d_sdef.s", ["; @launch kernel=sdef_kernel grid=(256,1,1) block=(512,1,1) lds=0"], [dummy("sdef_kernel", "", 14)])
make("d_slds.s", ["; @launch kernel=slds_kernel grid=(256,1,1) block=(512,1,1) lds=163840"], [dummy("slds_kernel", "nt", 14, lds=True)])
make("d_empty.s", ["; @launch kernel=emp_kernel grid=(256,1,1) block=(512,1,1) lds=0"], [dummy("emp_kernel", "nt", 0)])
```

```python
import sys
sys.path.insert(0, "gen")
from common import *

def alu(kn, n_body, iters, big=True):
    a = Asm()
    kernel_header(a, kn)
    a.I("s_cmp_ge_u32 s2, 256")
    a.I(f"s_cbranch_scc1 {kn}_END")
    a.I("s_mov_b32 s60, 0")
    a.label(f"{kn}_LOOP")
    for i in range(n_body):
        if big:
            a.I(f"v_add_u32 v{8 + (i % 8)}, 0x12345, v{8 + (i % 8)}")
        else:
            a.I(f"v_add_u32 v{8 + (i % 8)}, 1, v{8 + (i % 8)}")
    a.I("s_add_u32 s60, s60, 1")
    a.I(f"s_cmp_lt_u32 s60, {iters}")
    a.I(f"s_cbranch_scc1 {kn}_LOOP")
    a.label(f"{kn}_END")
    a.I("s_endpgm")
    return a.text(), kernel_desc(kn, 32, 80)

base = open("v0_ntkv.s").read()

def make(path, extra_launch, kernels):
    s = base
    lines = s.split("\n")
    idx = max(i for i, l in enumerate(lines) if l.startswith("; @launch"))
    lines[idx+1:idx+1] = extra_launch
    s = "\n".join(lines)
    code = "".join(k[0] for k in kernels)
    desc = "".join(k[1] for k in kernels)
    s = s.replace('.section .rodata,"a"', code + '.section .rodata,"a"')
    s = s.rstrip() + "\n" + desc
    open(path, "w").write(s)

L = "; @launch kernel={}_kernel grid=(256,1,1) block=(64,1,1) lds=0"
make("e_base.s", [], [])
make("e_loop.s", [L.format("lp")], [alu("lp_kernel", 128, 16)])
make("e_line.s", [L.format("ln")], [alu("ln_kernel", 2048, 1)])
make("e_line4.s", [L.format("ln4")], [alu("ln4_kernel", 2048, 1, big=False)])
make("e_line2x.s", [L.format("ln"), L.format("ln")], [alu("ln_kernel", 2048, 1)])
make("e_loop2x.s", [L.format("lp"), L.format("lp")], [alu("lp_kernel", 128, 16)])
```

```python
import sys
sys.path.insert(0, "gen")
from common import *

def alu(kn, n_body, iters, big=True, pf=False, sleep=False):
    a = Asm()
    kernel_header(a, kn)
    a.I("s_cmp_ge_u32 s2, 256")
    a.I(f"s_cbranch_scc1 {kn}_END")
    if pf:
        a.I("s_getpc_b64 s[40:41]")
        a.I("v_lshlrev_b32 v5, 7, v0")
        nb = n_body * (8 if big else 4)
        for k in range((nb + 8191) // 8192):
            a.I(f"v_cmp_gt_u32 vcc, {nb}, v5")
            a.I("s_and_saveexec_b64 s[44:45], vcc")
            a.I(f"global_load_dword v{20+k}, v5, s[40:41]")
            a.I("s_mov_b64 exec, s[44:45]")
            a.I("v_add_u32 v5, 8192, v5")
        a.I("s_waitcnt vmcnt(0)")
    a.I("s_mov_b32 s60, 0")
    a.label(f"{kn}_LOOP")
    for i in range(n_body):
        if big:
            a.I(f"v_add_u32 v{8 + (i % 8)}, 0x12345, v{8 + (i % 8)}")
        else:
            a.I(f"v_add_u32 v{8 + (i % 8)}, 1, v{8 + (i % 8)}")
    a.I("s_add_u32 s60, s60, 1")
    a.I(f"s_cmp_lt_u32 s60, {iters}")
    a.I(f"s_cbranch_scc1 {kn}_LOOP")
    a.label(f"{kn}_END")
    a.I("s_endpgm")
    return a.text(), kernel_desc(kn, 32, 80)

base = open("v0_ntkv.s").read()

def make(path, extra_launch, kernels):
    s = base
    lines = s.split("\n")
    idx = max(i for i, l in enumerate(lines) if l.startswith("; @launch"))
    lines[idx+1:idx+1] = extra_launch
    s = "\n".join(lines)
    code = "".join(k[0] for k in kernels)
    desc = "".join(k[1] for k in kernels)
    s = s.replace('.section .rodata,"a"', code + '.section .rodata,"a"')
    s = s.rstrip() + "\n" + desc
    open(path, "w").write(s)


L = "; @launch kernel={}_kernel grid=(256,1,1) block=(64,1,1) lds=0"
make("f_base.s", [], [])
make("f_line.s", [L.format("ln")], [alu("ln_kernel", 2048, 1)])
make("f_linepf.s", [L.format("ln")], [alu("ln_kernel", 2048, 1, pf=True)])
make("f_loop.s", [L.format("lp")], [alu("lp_kernel", 128, 16)])
make("f_looppf.s", [L.format("lp")], [alu("lp_kernel", 128, 16, pf=True)])
make("f_line1k.s", [L.format("ln")], [alu("ln_kernel", 1024, 1)])
```

```python
import sys, math, struct
sys.path.insert(0, "gen")
from common import *

def f2h(x):
    return struct.unpack("<I", struct.pack("<f", x))[0]

WS_EPOCH = 0
WS_QP = 0x1000
WS_OP = 0x50000
WS_HP = 0xA0000
WS_FP = 0x140000
WS_SLOW = 0x400000
NFAST = 8
L_TX, L_TA, L_QL, L_ML, L_RZ = 0, 4608, 5120, 5632, 6144
L_FLAG = 5760
L_RQ, L_RO, L_RG, L_RF, L_RX = 8192, 24576, 32768, 40960, 81920
LDS_BYTES = 40960
OOB = 0x40000000
SPIN_LIMIT = 1 << 15

sX, sK, sV, sWQ, sWO, sWG, sWU, sWD, sOUT, sWS, sDBG, sGS, sOS = 4, 8, 12, 16, 20, 24, 28, 32, 36, 40, 44, 48, 52
sWAVE, sXC, sSG, sKVH, sJ, sB, sSPL, sCS, sFR, sKV0, sKV1 = 56, 57, 58, 59, 60, 61, 62, 63, 64, 65, 66
sT0, sT1, sT2 = 67, 68, 69
sTAG, sTB = 70, 71
sSEL01, sSEL23, sSCALE, sL2E, sE, sRETRY = 75, 76, 77, 78, 79, 80
sQO = 81
sGO, sOO, sOX, sHI = 84, 85, 86, 87
sM0 = 88

vTID, vLANE, vWAVE, vI, vG = 0, 1, 2, 3, 4
vKO, vVO, vQOFF, vGOFF, vOOFF, vO4, vOX = 5, 6, 7, 8, 9, 10, 11
vM = 12
vFF, vPQ, vPG, vPA = 16, 17, 18, 19
vBA, vBB = 20, 24
accO, accG, accF, accX = 28, 32, 36, 56
accQ = accX
vD = 36
vS = 60
vPGv = 68
vT = 78
rA, rB, rC = 88, 120, 152
NVGPR = 168


class VM:
    def __init__(self, a):
        self.a = a
        self.seq = []

    def issue(self, name, text, optional=False):
        self.a.I(text)
        if not optional:
            self.seq.append(name)

    def wait(self, name):
        n = len(self.seq) - 1 - self.seq.index(name)
        self.a.I(f"s_waitcnt vmcnt({n})")


def gen(path, diag=False, stamp_sel=None, stampwave=4, P=None):
    P = dict(dict(qflag="K5", prio=2, nib=3, tlb=False, tlb_wave=3, opre=(1, 1, 1, 1), nmid=2, gwait="O1", og_at="B6", nfast=16, codepf=None, fgpipe=True, fgsleep=0, fp_st="sc1", fp_ld="sc1", hgpipe=True), **(P or {}))
    a = Asm()
    a.raw(HEADER_COMMENTS.rstrip())
    a.raw(f"; @launch grid=(256,1,1) block=(768,1,1) lds={LDS_BYTES}")
    a.raw('.amdgcn_target "amdgcn-amd-amdhsa--gfx950"')
    a.raw(".text")
    kn = NAME + "_kernel"
    kernel_header(a, kn)
    stamps = []
    lab = [0]
    STAMP_REGS = [96, 100, 24, 26, 28, 30, 52, 54, 2000]

    def L(prefix):
        lab[0] += 1
        return f"{prefix}_{lab[0]}"

    def stamp(name):
        if diag and (stamp_sel is None or name in stamp_sel or name == "end"):
            if name in stamps:
                r = STAMP_REGS[stamps.index(name)]
            else:
                r = STAMP_REGS[len(stamps)]
                assert r < 200, "too many stamps"
                stamps.append(name)
            a.I(f"s_memrealtime s[{r}:{r+1}]")

    def role(op, n):
        lbl = L("SKIP")
        a.fence()
        a.I(f"s_cmp_{op}_u32 s{sWAVE}, {n}")
        a.I(f"s_cbranch_scc0 {lbl}")
        return lbl

    def tagit(r0):
        for c in range(4):
            a.I(f"v_bfi_b32 v{r0+c}, v{vFF}, s{sTB+c}, v{r0+c}")

    def untag(r0, n=4):
        for c in range(n):
            a.I(f"v_and_b32 v{r0+c}, s{sHI}, v{r0+c}")

    def check(r0, t0, t1, sdst):
        a.I(f"v_perm_b32 v{t0}, v{r0+1}, v{r0}, s{sSEL01}")
        a.I(f"v_perm_b32 v{t1}, v{r0+3}, v{r0+2}, s{sSEL23}")
        a.I(f"v_or_b32 v{t0}, v{t0}, v{t1}")
        a.I(f"v_cmp_ne_u32 s[{sdst}:{sdst+1}], s{sTAG}, v{t0}")

    def make_tag():
        a.I(f"s_mul_i32 s{sTAG}, s{sE}, 0x9E3779B1")
        a.I(f"s_add_u32 s{sTAG}, s{sTAG}, 0x7F4A7C15")
        for c in range(4):
            a.I(f"s_bfe_u32 s{sTB+c}, s{sTAG}, {(8 << 16) | (8*c):#x}")

    def wait_flag(off):
        lr = L("FLAGW")
        a.I(f"v_mov_b32 v{vT+8}, {L_FLAG + off}")
        a.I(f"s_mov_b32 s{sRETRY}, 0")
        a.fence()
        a.label(lr)
        a.I(f"ds_read_b32 v{vT+9}, v{vT+8}")
        a.I(f"s_add_u32 s{sRETRY}, s{sRETRY}, 1")
        a.I("s_waitcnt lgkmcnt(0)")
        a.I(f"v_readfirstlane_b32 s{sT2}, v{vT+9}")
        a.I(f"s_cmp_gt_u32 s{sRETRY}, {SPIN_LIMIT * 8}")
        a.I(f"s_cselect_b32 s{sT2}, 1, s{sT2}")
        a.I(f"s_cmp_eq_u32 s{sT2}, 0")
        a.I(f"s_cbranch_scc1 {lr}")

    def set_flag(off):
        lbl = role("eq", 0)
        a.I(f"v_mov_b32 v{vT+8}, {L_FLAG + off}")
        a.I(f"v_mov_b32 v{vT+9}, 1")
        a.I(f"ds_write_b32 v{vT+8}, v{vT+9}")
        a.label(lbl)

    sEFF = 83

    def gather_issue(mk, bases):
        for t in mk(bases):
            a.I(t)

    def gather_loop(name, mk, bases, checks, sleep, preissued=False, pipe=False):
        a.I(f"s_mov_b32 s{sRETRY}, 0")
        ld, lc = L(name + "_OK"), L(name + "_CHK")
        n = len(checks)
        if not preissued:
            for t in mk(bases):
                a.I(t)
        def reissue():
            a.I(f"s_add_u32 s{sRETRY}, s{sRETRY}, 1")
            a.I(f"s_and_b32 s{sT2}, s{sRETRY}, 1")
            a.I(f"s_cmp_ge_u32 s{sRETRY}, {P['nfast']}")
            a.I(f"s_cselect_b32 s{sT2}, s{sT2}, 0")
            a.I(f"s_mul_i32 s{sT2}, s{sT2}, {WS_SLOW}")
            effs = []
            for k, bs in enumerate(bases):
                a.I(f"s_add_u32 s{sEFF+k}, s{bs}, s{sT2}")
                effs.append(sEFF + k)
            for t in mk(effs):
                a.I(t)
        def checks_all(extra):
            first = True
            for k, r in enumerate(checks):
                a.I(f"s_waitcnt vmcnt({n - 1 - k + extra})")
                dst = sM0 if first else sM0 + 2
                check(r, vT + 8, vT + 9, dst)
                if not first:
                    a.I(f"s_or_b64 s[{sM0}:{sM0+1}], s[{sM0}:{sM0+1}], s[{sM0+2}:{sM0+3}]")
                first = False
            a.I(f"s_cmp_eq_u64 s[{sM0}:{sM0+1}], 0")
            a.I(f"s_cbranch_scc1 {ld}")
        if pipe:
            lp = L(name + "_PIPE")
            a.fence()
            a.label(lp)
            a.I(f"s_add_u32 s{sRETRY}, s{sRETRY}, 1")
            for t in mk(bases):
                a.I(t)
            checks_all(n)
            a.I(f"s_cmp_lt_u32 s{sRETRY}, {P['nfast'] - 1}")
            a.I(f"s_cbranch_scc1 {lp}")
        a.fence()
        a.label(lc)
        checks_all(0)
        if sleep:
            a.I(f"s_sleep {sleep}")
        a.I(f"s_cmp_gt_u32 s{sRETRY}, {SPIN_LIMIT}")
        a.I(f"s_cbranch_scc1 {ld}")
        reissue()
        a.I(f"s_branch {lc}")
        a.label(ld)
        if diag:
            slot = {"QG": 12, "OG": 13, "HG": 14}[name]
            a.I(f"v_writelane_b32 v{NVGPR-1}, s{sRETRY}, {slot}")

    def publish(r0, voff, soff, suffix=""):
        a.I(f"buffer_store_dwordx4 v[{r0}:{r0+3}], v{voff}, s[{sWS}:{sWS+3}], s{soff} offen {suffix}")
        a.I(f"s_add_u32 s{sT2}, s{soff}, {WS_SLOW}")
        a.I(f"buffer_store_dwordx4 v[{r0}:{r0+3}], v{voff}, s[{sWS}:{sWS+3}], s{sT2} offen {suffix} sc1")

    a.I("s_cmp_ge_u32 s2, 256")
    a.I("s_cbranch_scc1 END")
    ptrs = (("x", sX), ("wq", sWQ), ("k", sK), ("ws", sWS), ("v", sV), ("wg", sWG), ("wu", sWU), ("wo", sWO),
            ("wd", sWD), ("out", sOUT))
    for nm, r in ptrs:
        a.I(f"s_load_dwordx2 s[{r}:{r+1}], s[0:1], {OFF[nm]}")
    if diag:
        a.I(f"s_load_dwordx2 s[{sDBG}:{sDBG+1}], s[0:1], {OFF['dbg']}")
    if diag or P.get("selftime") or P.get("startdbg"):
        a.I("s_memrealtime s[98:99]")
    a.I(f"v_lshrrev_b32 v{vWAVE}, 6, v{vTID}")
    a.I(f"v_and_b32 v{vLANE}, 63, v{vTID}")
    a.I(f"v_readfirstlane_b32 s{sWAVE}, v{vWAVE}")
    for nm, r in ptrs:
        a.I(f"s_mov_b32 s{r+2}, {SIZE[nm]}")
        a.I(f"s_mov_b32 s{r+3}, 0x20000")
    if diag:
        a.I(f"s_mov_b32 s{sDBG+2}, {P.get('dbgsize', 65536)}")
        a.I(f"s_mov_b32 s{sDBG+3}, 0x20000")
    a.I(f"v_and_b32 v{vI}, 15, v{vLANE}")
    a.I(f"v_lshrrev_b32 v{vG}, 4, v{vLANE}")
    a.I(f"v_lshlrev_b32 v{vVO}, 4, v{vLANE}")
    a.I(f"s_and_b32 s{sXC}, s2, 7")
    a.I(f"s_lshr_b32 s{sSG}, s2, 3")
    a.I(f"s_lshr_b32 s{sT0}, s{sSG}, 4")
    a.I(f"s_lshl_b32 s{sKVH}, s{sXC}, 1")
    a.I(f"s_add_u32 s{sKVH}, s{sKVH}, s{sT0}")
    a.I(f"s_and_b32 s{sJ}, s{sSG}, 15")
    a.I(f"s_lshr_b32 s{sB}, s{sJ}, 3")
    a.I(f"s_and_b32 s{sSPL}, s{sJ}, 7")
    a.I(f"s_lshr_b32 s{sT0}, s{sSG}, 2")
    a.I(f"s_lshl_b32 s{sCS}, s{sXC}, 3")
    a.I(f"s_add_u32 s{sCS}, s{sCS}, s{sT0}")
    a.I(f"s_and_b32 s{sFR}, s{sSG}, 3")
    a.I(f"v_mov_b32 v{vFF}, 0xff")
    a.I(f"s_mov_b32 s{sHI}, 0xffffff00")
    a.I(f"s_mov_b32 s{sSEL01}, 0x0c0c0400")
    a.I(f"s_mov_b32 s{sSEL23}, 0x04000c0c")
    a.I(f"s_mov_b32 s{sL2E}, {f2h(math.log2(math.e)):#x}")
    a.I(f"s_cmp_ge_u32 s{sWAVE}, 4")
    a.I("s_cbranch_scc1 STREAM")

    if P["prio"]:
        a.I(f"s_setprio {P['prio']}")
    a.I(f"v_mov_b32 v{rC}, 0")
    a.I(f"v_lshlrev_b32 v{vT}, 1, v{vLANE}")
    a.I(f"s_mul_i32 s{sT1}, s{sWAVE}, 1152")
    a.I("s_waitcnt lgkmcnt(0)")
    a.I(f"s_load_dword s{sE}, s[{sWS}:{sWS+1}], {WS_EPOCH}")
    if P["codepf"]:
        lbl = role("eq", 3)
        if P["codepf"] == "some":
            a.I(f"s_cmp_lt_u32 s{sSG}, 4")
            a.I(f"s_cbranch_scc0 {lbl}")
        a.I(f"s_getpc_b64 s[{sM0}:{sM0+1}]")
        a.label("PFBASE")
        a.I(f"v_lshlrev_b32 v{rA}, 7, v{vLANE}")
        a.I(f"v_add_u32 v{rA+1}, 8192, v{rA}")
        a.I(f"global_load_dword v{rA+2}, v{rA}, s[{sM0}:{sM0+1}]")
        a.raw(f"    v_cmp_gt_u32 vcc, (END-PFBASE), v{rA+1}")
        a.I(f"s_and_saveexec_b64 s[{sM0+2}:{sM0+3}], vcc")
        a.I(f"global_load_dword v{rA+3}, v{rA+1}, s[{sM0}:{sM0+1}]")
        a.I(f"s_mov_b64 exec, s[{sM0+2}:{sM0+3}]")
        a.label(lbl)
    if P["tlb"]:
        lbl = role("eq", P["tlb_wave"])
        J = [81, 82, 83, 84, 85, 86, 65, 66, 48, 49, 50, 51, 52, 53]
        jn = [0]
        def touch(base, off_s=None, imm=0):
            d = J[jn[0]]; jn[0] += 1
            if off_s is None:
                a.I(f"s_load_dword s{d}, s[{base}:{base+1}], {imm}")
            else:
                a.I(f"s_load_dword s{d}, s[{base}:{base+1}], s{off_s}")
        a.I(f"s_lshl_b32 s{sT0}, s{sB}, 4")
        a.I(f"s_add_u32 s{sT0}, s{sT0}, s{sKVH}")
        a.I(f"s_lshl_b32 s{sT0}, s{sT0}, 21")
        a.I(f"s_add_u32 s{sT0}, s{sT0}, {6144*256}")
        touch(sK, sT0)
        touch(sV, sT0)
        a.I(f"s_mul_i32 s{sT0}, s{sFR}, {144*9216}")
        touch(sWG, sT0)
        touch(sWU, sT0)
        a.I(f"s_add_u32 s{sT0}, s{sT0}, {143*9216}")
        touch(sWG, sT0)
        touch(sWU, sT0)
        a.I(f"s_mul_i32 s{sT0}, s{sKVH}, {256*1152}")
        touch(sWO, sT0)
        a.I(f"s_add_u32 s{sT0}, s{sT0}, {255*1152}")
        touch(sWO, sT0)
        a.I(f"s_mul_i32 s{sT0}, s{sCS}, {72*1152}")
        touch(sWD, sT0)
        a.I(f"s_add_u32 s{sT0}, s{sT0}, {71*1152}")
        touch(sWD, sT0)
        a.I(f"s_mov_b32 s{sT0}, 0x200000")
        touch(sWS, sT0)
        touch(sOUT, None, 0)
        a.label(lbl)
    lbl = role("lt", 2)
    xr = rA
    for i in range(9):
        a.I(f"buffer_load_ushort v{xr+i}, v{vT}, s[{sX}:{sX+3}], s{sT1} offen offset:{i*128}")
    a.label(lbl)
    for _ in range(P["nib"]):
        a.I("s_barrier")
    lbl = role("lt", 2)
    a.I("s_waitcnt vmcnt(0)")
    stamp("xland")
    for i in range(9):
        a.I(f"v_lshlrev_b32 v{xr+i}, 16, v{xr+i}")
    a.I(f"v_add_f32 v{vT+1}, v{xr}, v{xr+1}")
    a.I(f"v_add_f32 v{vT+3}, v{xr+2}, v{xr+3}")
    a.I(f"v_add_f32 v{vT+4}, v{xr+4}, v{xr+5}")
    a.I(f"v_add_f32 v{vT+5}, v{xr+6}, v{xr+7}")
    a.I(f"v_add_f32 v{vT+1}, v{vT+1}, v{vT+3}")
    a.I(f"v_add_f32 v{vT+4}, v{vT+4}, v{vT+5}")
    a.I(f"v_add_f32 v{vT+1}, v{vT+1}, v{xr+8}")
    a.I(f"v_add_f32 v{vT+1}, v{vT+1}, v{vT+4}")
    allreduce64(a, "v_add_f32", vT + 1, vT + 2)
    a.I(f"v_mul_f32 v{vT+1}, {f2h(1/576):#x}, v{vT+1}")
    dv = rA + 16
    for i in range(9):
        a.I(f"v_sub_f32 v{dv+i}, v{xr+i}, v{vT+1}")
    a.I(f"v_mul_f32 v{vT+4}, v{dv}, v{dv}")
    a.I(f"v_mul_f32 v{vT+5}, v{dv+1}, v{dv+1}")
    for i in range(2, 9):
        a.I(f"v_fmac_f32 v{vT+4+(i%2)}, v{dv+i}, v{dv+i}")
    a.I(f"v_add_f32 v{vT+4}, v{vT+4}, v{vT+5}")
    round_bf16(a, vT + 1, vT + 1)
    for i in range(9):
        a.I(f"v_sub_f32 v{xr+i}, v{xr+i}, v{vT+1}")
    allreduce64(a, "v_add_f32", vT + 4, vT + 2)
    a.I(f"v_mul_f32 v{vT+4}, {f2h(1/576):#x}, v{vT+4}")
    round_bf16(a, vT + 4, vT + 4)
    a.I(f"v_add_f32 v{vT+4}, {f2h(1e-5):#x}, v{vT+4}")
    round_bf16(a, vT + 4, vT + 4)
    a.I(f"v_sqrt_f32 v{vT+4}, v{vT+4}")
    for i in range(9):
        a.I(f"v_cvt_pk_bf16_f32 v{xr+i}, v{xr+i}, v{xr+i}")
    round_bf16(a, vT + 4, vT + 4)
    a.I(f"v_rcp_f32 v{vT+5}, v{vT+4}")
    for i in range(9):
        a.I(f"v_and_b32 v{xr+i}, 0xffff0000, v{xr+i}")
    a.I(f"s_mul_i32 s{sT0}, s{sWAVE}, 2304")
    a.I(f"v_lshlrev_b32 v{vT+6}, 2, v{vLANE}")
    a.I(f"v_add_u32 v{vT+6}, s{sT0}, v{vT+6}")
    for i in range(9):
        a.I(f"v_mul_f32 v{xr+i}, v{xr+i}, v{vT+5}")
    for i in range(9):
        a.I(f"v_cvt_pk_bf16_f32 v{xr+i}, v{xr+i}, v{xr+i}")
        a.I(f"ds_write_b32 v{vT+6}, v{xr+i} offset:{L_TX + i*256}")
    a.I("s_waitcnt lgkmcnt(0)")
    a.label(lbl)
    lbl = role("eq", 2)
    a.I(f"v_lshlrev_b32 v{vT+8}, 2, v{vLANE}")
    a.I(f"v_mov_b32 v{vT+9}, 0")
    a.I(f"v_cmp_gt_u32 vcc, 8, v{vLANE}")
    a.I(f"s_and_saveexec_b64 s[{sM0}:{sM0+1}], vcc")
    a.I(f"ds_write_b32 v{vT+8}, v{vT+9} offset:{L_FLAG}")
    a.I(f"s_mov_b64 exec, s[{sM0}:{sM0+1}]")
    a.I("s_waitcnt lgkmcnt(0)")
    a.label(lbl)
    a.I("s_barrier")
    stamp("B0")
    a.I(f"v_lshrrev_b32 v{vT}, 5, v{vLANE}")
    a.I(f"v_lshlrev_b32 v{vT}, 13, v{vT}")
    a.I(f"v_bfe_u32 v{vT+1}, v{vLANE}, 3, 2")
    a.I(f"v_lshl_add_u32 v{vT}, v{vT+1}, 8, v{vT}")
    a.I(f"v_and_b32 v{vT+2}, 7, v{vLANE}")
    a.I(f"v_lshl_add_u32 v{vT}, v{vT+2}, 4, v{vT}")
    a.I(f"v_lshrrev_b32 v{vT+3}, 5, v{vLANE}")
    a.I(f"v_lshlrev_b32 v{vT+3}, 8, v{vT+3}")
    a.I(f"v_lshl_add_u32 v{vT+3}, v{vT+1}, 6, v{vT+3}")
    a.I(f"v_lshl_add_u32 v{vT+3}, v{vT+2}, 1, v{vT+3}")
    a.I("s_barrier")
    a.I("s_waitcnt vmcnt(0) lgkmcnt(0)")
    make_tag()
    lbl = role("eq", 0)
    for w in range(8):
        a.I(f"ds_read_b128 v[{rA+4*w}:{rA+4*w+3}], v{vVO} offset:{L_RQ + w*1024}")
    a.I(f"s_lshl_b32 s{sT0}, s{sKVH}, 4")
    a.I(f"s_add_u32 s{sT0}, s{sT0}, s{sJ}")
    a.I(f"s_lshl_b32 s{sT0}, s{sT0}, 10")
    a.I(f"s_add_u32 s{sT0}, s{sT0}, {WS_QP}")
    for w in range(1, 8):
        a.I(f"s_waitcnt lgkmcnt({7-w})")
        for r in range(4):
            a.I(f"v_add_f32 v{rA+r}, v{rA+r}, v{rA+4*w+r}")
    tagit(rA)
    publish(rA, vVO, sT0)
    stamp("qpub")
    a.label(lbl)
    lbl = role("eq", 2)
    a.I(f"s_lshl_b32 s{sT0}, s{sKVH}, 14")
    a.I(f"s_lshl_b32 s{sT1}, s{sB}, 7")
    a.I(f"s_add_u32 s{sT0}, s{sT0}, s{sT1}")
    a.I(f"s_add_u32 s{sT0}, s{sT0}, {WS_QP}")
    a.I(f"s_add_u32 s{sT1}, s{sT0}, 4096")
    if P["qflag"]:
        wait_flag(0)
    stamp("qflag")
    mkq = lambda so: [f"buffer_load_dwordx4 v[{rA+4*w}:{rA+4*w+3}], v{vT}, s[{sWS}:{sWS+3}], s{so[0] if w < 4 else so[1]} offen offset:{(w%4)*1024} sc1"
                      for w in range(8)]
    gather_loop("QG", mkq, [sT0, sT1], [rA + 4 * w for w in range(8)], P.get("qg_retry_sleep", 4))
    stamp("gq")
    untag(rA, 32)
    for w in range(1, 8):
        for r in range(4):
            a.I(f"v_add_f32 v{rA+r}, v{rA+r}, v{rA+4*w+r}")
    a.I(f"v_cvt_pk_bf16_f32 v{rA}, v{rA}, v{rA+1}")
    a.I(f"v_cvt_pk_bf16_f32 v{rA+2}, v{rA+2}, v{rA+3}")
    a.I(f"ds_write_b16 v{vT+3}, v{rA} offset:{L_QL}")
    a.I(f"ds_write_b16_d16_hi v{vT+3}, v{rA} offset:{L_QL+16}")
    a.I(f"ds_write_b16 v{vT+3}, v{rA+2} offset:{L_QL+32}")
    a.I(f"ds_write_b16_d16_hi v{vT+3}, v{rA+2} offset:{L_QL+48}")
    a.I("s_waitcnt lgkmcnt(0)")
    a.label(lbl)
    a.I("s_barrier")
    stamp("B3")
    a.I("s_barrier")
    lbl = role("eq", 1)
    for w in range(8):
        a.I(f"ds_read_b128 v[{rA+4*w}:{rA+4*w+3}], v{vVO} offset:{L_RO + w*1024}")
    a.I(f"v_lshrrev_b32 v{vT}, 3, v{vI}")
    a.I(f"v_lshlrev_b32 v{vT}, 3, v{vT}")
    ml = rB
    for w in range(8):
        a.I(f"ds_read_b64 v[{ml+2*w}:{ml+2*w+1}], v{vT} offset:{L_ML + w*16}")
    a.I(f"s_lshl_b32 s{sT0}, s{sB}, 4")
    a.I(f"s_add_u32 s{sT0}, s{sT0}, s{sKVH}")
    a.I(f"s_lshl_b32 s{sT0}, s{sT0}, 3")
    a.I(f"s_add_u32 s{sT0}, s{sT0}, s{sSPL}")
    a.I(f"s_mul_i32 s{sT0}, s{sT0}, 1152")
    a.I(f"s_add_u32 s{sT0}, s{sT0}, {WS_OP}")
    a.I("s_waitcnt lgkmcnt(0)")
    vMM = vT + 2
    a.I(f"v_max3_f32 v{vMM}, v{ml}, v{ml+2}, v{ml+4}")
    a.I(f"v_max3_f32 v{vMM}, v{vMM}, v{ml+6}, v{ml+8}")
    a.I(f"v_max3_f32 v{vMM}, v{vMM}, v{ml+10}, v{ml+12}")
    a.I(f"v_max_f32 v{vMM}, v{vMM}, v{ml+14}")
    for w in range(8):
        a.I(f"v_sub_f32 v{ml+2*w}, v{ml+2*w}, v{vMM}")
    for w in range(8):
        a.I(f"v_mul_f32 v{ml+2*w}, s{sL2E}, v{ml+2*w}")
    for w in range(8):
        a.I(f"v_exp_f32 v{ml+2*w}, v{ml+2*w}")
    og, mg = rC, rC + 4
    for r in range(4):
        a.I(f"v_mul_f32 v{og+r}, v{rA+r}, v{ml}")
    a.I(f"v_mul_f32 v{mg+1}, v{ml+1}, v{ml}")
    for w in range(1, 8):
        for r in range(4):
            a.I(f"v_fmac_f32 v{og+r}, v{rA+4*w+r}, v{ml+2*w}")
        a.I(f"v_fmac_f32 v{mg+1}, v{ml+2*w+1}, v{ml+2*w}")
    a.I(f"v_mov_b32 v{mg}, v{vMM}")
    a.I(f"v_mov_b32 v{mg+2}, 0")
    a.I(f"v_mov_b32 v{mg+3}, 0")
    tagit(og)
    tagit(mg)
    publish(og, vVO, sT0)
    a.I(f"v_lshlrev_b32 v{vT}, 1, v{vT}")
    a.I(f"v_and_b32 v{vT+1}, 0x37, v{vLANE}")
    a.I(f"v_cmp_eq_u32 vcc, 0, v{vT+1}")
    a.I(f"s_and_saveexec_b64 s[{sM0}:{sM0+1}], vcc")
    publish(mg, vT, sT0, "offset:1024")
    a.I(f"s_mov_b64 exec, s[{sM0}:{sM0+1}]")
    stamp("opub")
    a.label(lbl)
    vHA, vHT, sHA = rC, rC + 1, sQO
    lbl = role("eq", 0)
    a.I(f"v_lshrrev_b32 v{vT}, 2, v{vLANE}")
    a.I(f"v_lshrrev_b32 v{vT+1}, 3, v{vT}")
    a.I(f"v_and_b32 v{vT+2}, 7, v{vT}")
    a.I(f"v_lshl_add_u32 v{vT+2}, v{vT+1}, 7, v{vT+2}")
    a.I(f"v_mul_u32_u24 v{vT+2}, 1152, v{vT+2}")
    a.I(f"s_lshl_b32 s{sT0}, s{sKVH}, 3")
    a.I(f"s_mul_i32 s{sT0}, s{sT0}, 1152")
    a.I(f"s_add_u32 s{sT0}, s{sT0}, {WS_OP}")
    a.I(f"s_lshl_b32 s{sT1}, s{sB}, 4")
    a.I(f"v_add_u32 v{vT+3}, s{sT1}, v{vT+2}")
    a.I(f"s_lshl_b32 s{sT1}, s{sB}, 3")
    a.I(f"s_add_u32 s{sT1}, s{sT1}, s{sSPL}")
    a.I(f"s_lshl_b32 s{sT1}, s{sT1}, 4")
    a.I(f"v_and_b32 v{vT+4}, 3, v{vLANE}")
    a.I(f"v_lshl_add_u32 v{vT+2}, v{vT+4}, 8, v{vT+2}")
    a.I(f"v_add_u32 v{vT+2}, s{sT1}, v{vT+2}")
    a.label(lbl)
    lbl = role("eq", 3)
    a.I(f"v_lshrrev_b32 v{vHA}, 5, v{vLANE}")
    a.I(f"v_lshlrev_b32 v{vHA}, 11, v{vHA}")
    a.I(f"v_bfe_u32 v{vT+1}, v{vLANE}, 4, 1")
    a.I(f"v_lshl_add_u32 v{vHA}, v{vT+1}, 10, v{vHA}")
    a.I(f"v_bfe_u32 v{vT+1}, v{vLANE}, 2, 2")
    a.I(f"v_lshl_add_u32 v{vHA}, v{vT+1}, 8, v{vHA}")
    a.I(f"v_bfe_u32 v{vT+2}, v{vLANE}, 1, 1")
    a.I(f"v_lshl_add_u32 v{vHA}, v{vT+2}, 7, v{vHA}")
    a.I(f"v_and_b32 v{vT+3}, 1, v{vLANE}")
    a.I(f"v_lshl_add_u32 v{vHA}, v{vT+3}, 4, v{vHA}")
    a.I(f"s_lshl_b32 s{sHA}, s{sCS}, 13")
    a.I(f"s_lshl_b32 s{sT1}, s{sFR}, 5")
    a.I(f"s_add_u32 s{sHA}, s{sHA}, s{sT1}")
    a.I(f"s_add_u32 s{sHA}, s{sHA}, {WS_HP}")
    a.I(f"s_add_u32 s{sHA+1}, s{sHA}, 4096")
    a.I(f"v_mul_u32_u24 v{vHT}, 160, v{vT+2}")
    a.I(f"v_lshl_add_u32 v{vHT}, v{vT+1}, 5, v{vHT}")
    a.I(f"v_lshl_add_u32 v{vHT}, v{vT+3}, 2, v{vHT}")
    a.label(lbl)
    OG, MG = rA, rA + 4
    H0, H1 = rB, rB + 4
    mko = lambda so: [f"buffer_load_dwordx4 v[{OG}:{OG+3}], v{vT+2}, s[{sWS}:{sWS+3}], s{so[0]} offen sc1",
                      f"buffer_load_dwordx4 v[{MG}:{MG+3}], v{vT+3}, s[{sWS}:{sWS+3}], s{so[0]} offen offset:1024 sc1"]
    mkh = lambda so: [f"buffer_load_dwordx4 v[{H0}:{H0+3}], v{vHA}, s[{sWS}:{sWS+3}], s{so[0]} offen sc1",
                      f"buffer_load_dwordx4 v[{H0+4}:{H0+7}], v{vHA}, s[{sWS}:{sWS+3}], s{so[1]} offen sc1"]
    a.I("s_barrier")
    if P["og_at"] == "B6":
        lbl = role("eq", 0)
        gather_issue(mko, [sT0])
        a.label(lbl)
    lbl = role("ge", 2)
    a.I(f"s_sub_u32 s{sT1}, s{sWAVE}, 2")
    a.I(f"s_lshl_b32 s{sT2}, s{sT1}, 12")
    a.I(f"v_add_u32 v{vT}, s{sT2}, v{vVO}")
    for w in range(4):
        a.I(f"ds_read_b128 v[{rA+4*w}:{rA+4*w+3}], v{vT} offset:{L_RG + w*1024}")
    a.I(f"s_lshl_b32 s{sT0}, s{sCS}, 2")
    a.I(f"s_add_u32 s{sT0}, s{sT0}, s{sFR}")
    a.I(f"s_lshl_b32 s{sT0}, s{sT0}, 11")
    a.I(f"s_lshl_b32 s{sT1}, s{sT1}, 10")
    a.I(f"s_add_u32 s{sT0}, s{sT0}, s{sT1}")
    a.I(f"s_add_u32 s{sT0}, s{sT0}, {WS_HP}")
    for w in range(1, 4):
        a.I(f"s_waitcnt lgkmcnt({3-w})")
        for r in range(4):
            a.I(f"v_add_f32 v{rA+r}, v{rA+r}, v{rA+4*w+r}")
    tagit(rA)
    publish(rA, vVO, sT0)
    stamp("hpub")
    a.label(lbl)
    a.I("s_barrier")
    if P["og_at"] == "B6b":
        lbl = role("eq", 0)
        gather_issue(mko, [sT0])
        a.label(lbl)
    lbl = role("eq", 3)
    a.I(f"v_cmp_gt_u32 vcc, 12, v{vI}")
    a.I(f"s_and_saveexec_b64 s[{sM0+4}:{sM0+5}], vcc")
    a.I("s_barrier")
    gather_issue(mkh, [sHA, sHA + 1])
    stamp("hflag")
    a.I("s_barrier")
    lo = L("H3J")
    a.I(f"s_branch {lo}")
    a.label(lbl)
    a.I("s_barrier")
    if P["og_at"] == "B6c":
        lbl = role("eq", 0)
        gather_issue(mko, [sT0])
        a.label(lbl)
    a.I("s_barrier")
    a.label(lo)
    lbl = role("eq", 0)
    gather_loop("OG", mko, [sT0], [OG, MG], P.get("og_retry_sleep", 0), preissued=True)
    stamp("og")
    untag(OG)
    untag(MG, 2)
    a.I(f"v_mov_b32 v{vT+5}, v{MG}")
    a.I(f"v_max_f32_dpp v{vT+5}, v{vT+5}, v{vT+5} row_ror:4 {DPPM}")
    a.I(f"v_max_f32_dpp v{vT+5}, v{vT+5}, v{vT+5} row_ror:8 {DPPM}")
    a.I(f"v_mov_b32 v{vT+6}, v{vT+5}")
    a.I(f"v_permlane16_swap_b32 v{vT+5}, v{vT+6}")
    a.I(f"v_max_f32 v{vT+5}, v{vT+5}, v{vT+6}")
    a.I(f"v_sub_f32 v{vT+6}, v{MG}, v{vT+5}")
    a.I(f"v_mul_f32 v{vT+6}, s{sL2E}, v{vT+6}")
    a.I(f"v_exp_f32 v{vT+6}, v{vT+6}")
    vals = [OG, OG + 1, OG + 2, OG + 3, MG + 1]
    for r in vals:
        a.I(f"v_mul_f32 v{r}, v{r}, v{vT+6}")
    for r in vals:
        a.I(f"v_add_f32_dpp v{r}, v{r}, v{r} row_ror:4 {DPPM}")
    for r in vals:
        a.I(f"v_add_f32_dpp v{r}, v{r}, v{r} row_ror:8 {DPPM}")
    for k, r in enumerate(vals):
        a.I(f"v_mov_b32 v{rA+8+k}, v{r}")
    for k, r in enumerate(vals):
        a.I(f"v_permlane16_swap_b32 v{r}, v{rA+8+k}")
    for k, r in enumerate(vals):
        a.I(f"v_add_f32 v{r}, v{r}, v{rA+8+k}")
    a.I(f"v_rcp_f32 v{MG+1}, v{MG+1}")
    for r in range(4):
        a.I(f"v_mul_f32 v{OG+r}, v{OG+r}, v{MG+1}")
    for r in range(4):
        a.I(f"v_cvt_pk_bf16_f32 v{OG+r}, v{OG+r}, v{OG+r}")
    a.I(f"v_lshrrev_b32 v{vT}, 5, v{vLANE}")
    a.I(f"v_mul_u32_u24 v{vT}, 160, v{vT}")
    a.I(f"v_lshl_add_u32 v{vT}, v{vT+4}, 4, v{vT}")
    a.I(f"v_and_b32 v{vT+1}, 0x1c, v{vLANE}")
    a.I(f"v_cmp_eq_u32 vcc, 0, v{vT+1}")
    a.I(f"s_and_saveexec_b64 s[{sM0}:{sM0+1}], vcc")
    a.I(f"ds_write_b128 v{vT}, v[{OG}:{OG+3}] offset:{L_TA}")
    a.I(f"s_mov_b64 exec, s[{sM0}:{sM0+1}]")
    a.label(lbl)
    lbl = role("eq", 3)
    gather_loop("HG", mkh, [sHA, sHA + 1], [H0, H1], P.get("hg_retry_sleep", 0), preissued=True, pipe=P["hgpipe"])
    stamp("hg")
    a.I(f"s_mov_b64 exec, s[{sM0+4}:{sM0+5}]")
    for c in range(8):
        a.I(f"v_and_b32 v{rB+8+c}, s{sHI}, v{H0+c}")
    H0, H1 = rB + 8, rB + 12
    for r in range(4):
        a.I(f"v_add_f32 v{H0+r}, v{H0+r}, v{H1+r}")
    for r in range(4):
        a.I(f"v_mov_b32 v{H1+r}, v{H0+r}")
    for r in range(4):
        a.I(f"v_permlane32_swap_b32 v{H0+r}, v{H1+r}")
    for r in range(4):
        a.I(f"v_add_f32 v{H0+r}, v{H0+r}, v{H1+r}")
    for r in range(4):
        a.I(f"v_mov_b32 v{H1+r}, v{H0+r}")
    for r in range(4):
        a.I(f"v_permlane16_swap_b32 v{H0+r}, v{H1+r}")
    for r in range(4):
        a.I(f"v_cvt_pk_bf16_f32 v{H0+r}, v{H0+r}, v{H1+r}")
    for r in range(4):
        a.I(f"v_lshlrev_b32 v{H1+r}, 16, v{H0+r}")
        a.I(f"v_and_b32 v{H0+r}, 0xffff0000, v{H0+r}")
    for r in range(4):
        a.I(f"v_max_f32 v{H1+r}, 0, v{H1+r}")
    for r in range(4):
        a.I(f"v_mul_f32 v{H0+r}, v{H0+r}, v{H1+r}")
    for r in range(4):
        a.I(f"v_cvt_pk_bf16_f32 v{H0+r}, v{H0+r}, v{H0+r}")
    a.I(f"v_cmp_gt_u32 vcc, 12, v{vLANE}")
    a.I(f"s_and_saveexec_b64 s[{sM0}:{sM0+1}], vcc")
    for r in range(4):
        a.I(f"ds_write_b32 v{vHT}, v{H0+r} offset:{L_TA + 64 + r*8}")
    a.I(f"s_mov_b64 exec, s[{sM0}:{sM0+1}]")
    a.label(lbl)
    a.I("s_waitcnt lgkmcnt(0)")
    a.I("s_barrier")
    stamp("B7")
    a.I("s_branch FIN")

    a.hist = []
    a.label("STREAM")
    vm = VM(a)
    a.I(f"s_sub_u32 s{sWAVE}, s{sWAVE}, 4")
    a.I(f"v_subrev_u32 v{vWAVE}, 4, v{vWAVE}")
    a.I(f"v_subrev_u32 v{vTID}, 256, v{vTID}")
    a.I(f"v_lshlrev_b32 v{vQOFF}, 13, v{vG}")
    a.I(f"v_lshl_add_u32 v{vQOFF}, v{vI}, 4, v{vQOFF}")
    a.I(f"s_mul_i32 s{sQO}, s{sSPL}, 72")
    a.I(f"s_lshl_b32 s{sT0}, s{sWAVE}, 2")
    a.I(f"s_add_u32 s{sQO}, s{sQO}, s{sT0}")
    a.I(f"s_lshl_b32 s{sT2}, s{sQO}, 2")
    a.I(f"s_lshl_b32 s{sQO}, s{sQO}, 13")
    a.I(f"s_lshl_b32 s{sT0}, s{sKVH}, 1")
    a.I(f"s_add_u32 s{sT0}, s{sT0}, s{sB}")
    a.I(f"s_lshl_b32 s{sT0}, s{sT0}, 8")
    a.I(f"s_add_u32 s{sQO}, s{sQO}, s{sT0}")
    a.I(f"s_add_u32 s{sQO+1}, s{sQO}, {32*8192}")
    a.I(f"s_add_u32 s{sQO+2}, s{sQO}, {64*8192}")
    a.I(f"s_cmp_lt_u32 s{sWAVE}, 2")
    a.I(f"s_cselect_b32 s{sQO+2}, s{sQO+2}, {OOB}")
    a.I(f"s_lshl_b32 s{sKV0}, s{sB}, 4")
    a.I(f"s_add_u32 s{sKV0}, s{sKV0}, s{sKVH}")
    a.I(f"s_lshl_b32 s{sKV0}, s{sKV0}, 21")
    a.I(f"s_lshl_b32 s{sT0}, s{sSPL}, 16")
    a.I(f"s_add_u32 s{sKV0}, s{sKV0}, s{sT0}")
    a.I(f"s_lshl_b32 s{sT0}, s{sWAVE}, 10")
    a.I(f"s_add_u32 s{sKV0}, s{sKV0}, s{sT0}")
    a.I(f"s_add_u32 s{sKV0}, s{sKV0}, {6144*256}")
    a.I(f"v_lshrrev_b32 v{vKO}, 2, v{vI}")
    a.I(f"v_lshlrev_b32 v{vKO}, 8, v{vKO}")
    a.I(f"v_and_b32 v{vT+1}, 3, v{vI}")
    a.I(f"v_lshl_add_u32 v{vT+1}, v{vG}, 2, v{vT+1}")
    a.I(f"v_lshl_add_u32 v{vKO}, v{vT+1}, 4, v{vKO}")
    a.I("s_waitcnt lgkmcnt(0)")
    a.I(f"s_load_dword s{sE}, s[{sWS}:{sWS+1}], {WS_EPOCH}")

    rQ = rB
    def load_Q(k):
        vm.issue(f"Q{k}", f"buffer_load_dwordx4 v[{rQ+4*k}:{rQ+4*k+3}], v{vQOFF}, s[{sWQ}:{sWQ+3}], s{sQO+k} offen nt")
    def load_K(n):
        so = sKV0
        if n:
            a.I(f"s_add_u32 s{sKV1}, s{sKV0}, {n*8192}")
            so = sKV1
        vm.issue(f"K{n}", f"buffer_load_dwordx4 v[{rA+4*n}:{rA+4*n+3}], v{vKO}, s[{sK}:{sK+3}], s{so} offen nt")
    def load_V(n):
        so = sKV0
        if n:
            a.I(f"s_add_u32 s{sKV1}, s{sKV0}, {n*8192}")
            so = sKV1
        vm.issue(f"V{n}", f"buffer_load_dwordx4 v[{rB+4*n}:{rB+4*n+3}], v{vVO}, s[{sV}:{sV+3}], s{so} offen nt")
    def regG(n):
        return rC + 4 * n if n < 4 else rB + 4 * (n - 4)
    def load_G(n):
        if n > 0:
            a.I(f"s_add_u32 s{sGO}, s{sGO}, 9216")
        vm.issue(f"G{n}", f"buffer_load_dwordx4 v[{regG(n)}:{regG(n)+3}], v{vGOFF}, s[{sGS}:{sGS+3}], s{sGO} offen")
    def regO(n):
        return rA + 4 * n if n < 8 else rC
    def load_O(n):
        r = regO(n)
        if n < 4:
            if n: a.I(f"s_add_u32 s{sOO}, s{sOO}, {32*1152}")
            vm.issue(f"O{n}", f"buffer_load_dwordx4 v[{r}:{r+3}], v{vOOFF}, s[{sWO}:{sWO+3}], s{sOO} offen nt")
        elif n < 8:
            if n > 4: a.I(f"s_add_u32 s{sOX}, s{sOX}, {16*1152}")
            vm.issue(f"O{n}", f"buffer_load_dwordx4 v[{r}:{r+3}], v{vO4}, s[{sWD}:{sWD+3}], s{sOX} offen nt")
        else:
            a.I(f"s_add_u32 s{sOX}, s{sOX}, {16*1152}")
            vm.issue(f"O{n}", f"buffer_load_dwordx4 v[{r}:{r+3}], v{vOX}, s[{sWD}:{sWD+3}], s{sOX} offen nt")

    if P.get("xfirst", True):
        pass
    nib = [0]
    def ibar():
        if nib[0] < P["nib"]:
            a.I("s_barrier")
            nib[0] += 1
    load_Q(0)
    a.I(f"v_and_b32 v{vT+1}, 1, v{vI}")
    a.I(f"v_mov_b32 v{vT+2}, 0xffff")
    a.I(f"v_mov_b32 v{vT+3}, 0xffff0000")
    a.I(f"v_cmp_eq_u32 vcc, 1, v{vT+1}")
    a.I(f"v_cndmask_b32 v{vT+2}, v{vT+2}, v{vT+3}, vcc")
    a.I(f"v_bfe_u32 v{vT+1}, v{vI}, 1, 2")
    for r in range(4):
        a.I(f"v_cmp_eq_u32 vcc, {r}, v{vT+1}")
        a.I(f"v_cndmask_b32 v{vM+r}, 0, v{vT+2}, vcc")
    ibar()
    load_Q(1)
    a.I(f"v_lshrrev_b32 v{vT+1}, 3, v{vI}")
    a.I(f"v_mul_u32_u24 v{vT+2}, 576, v{vT+1}")
    a.I(f"v_add_lshl_u32 v{vT+2}, v{vT+2}, v{vG}, 2")
    a.I(f"v_add_u32 v{vPQ}, s{sT2}, v{vT+2}")
    a.I(f"s_and_b32 s{sT0}, s{sWAVE}, 3")
    a.I(f"s_mul_i32 s{sT0}, s{sT0}, 36")
    a.I(f"s_mul_i32 s{sT1}, s{sFR}, 144")
    a.I(f"s_add_u32 s{sT0}, s{sT0}, s{sT1}")
    a.I(f"s_mul_i32 s{sGO}, s{sT0}, 9216")
    a.I(f"s_mul_i32 s{sT1}, s{sCS}, 144")
    a.I(f"s_add_u32 s{sGO}, s{sGO}, s{sT1}")
    a.I(f"s_lshl_b32 s{sT0}, s{sT0}, 2")
    a.I(f"v_mul_u32_u24 v{vT+2}, 576, v{vT+1}")
    a.I(f"v_mul_u32_u24 v{vT+3}, 9, v{vG}")
    a.I(f"v_add_lshl_u32 v{vT+2}, v{vT+2}, v{vT+3}, 2")
    a.I(f"v_add_u32 v{vPG}, s{sT0}, v{vT+2}")
    ibar()
    load_Q(2)
    a.I(f"v_mul_u32_u24 v{vGOFF}, {9*9216}, v{vG}")
    a.I(f"v_lshl_add_u32 v{vGOFF}, v{vI}, 4, v{vGOFF}")
    a.I(f"v_mov_b32 v{vT+3}, {OOB}")
    a.I(f"v_cmp_gt_u32 vcc, 9, v{vI}")
    a.I(f"v_cndmask_b32 v{vGOFF}, v{vT+3}, v{vGOFF}, vcc")
    a.I(f"s_cmp_ge_u32 s{sWAVE}, 4")
    for c in range(4):
        a.I(f"s_cselect_b32 s{sGS+c}, s{sWU+c}, s{sWG+c}")
    ibar()
    load_K(0)
    assert nib[0] == P["nib"], (nib, P["nib"])
    a.I(f"s_lshl_b32 s{sT0}, s{sKVH}, 8")
    a.I(f"s_lshl_b32 s{sT1}, s{sB}, 7")
    a.I(f"s_add_u32 s{sT0}, s{sT0}, s{sT1}")
    a.I(f"s_add_u32 s{sT0}, s{sT0}, s{sSPL}")
    a.I(f"s_mul_i32 s{sOO}, s{sT0}, 1152")
    a.I(f"s_mul_i32 s{sT1}, s{sCS}, 72")
    a.I(f"s_lshl_b32 s{sT2}, s{sFR}, 1")
    a.I(f"s_add_u32 s{sT1}, s{sT1}, s{sT2}")
    a.I(f"s_mul_i32 s{sOX}, s{sT1}, 1152")
    a.I(f"s_lshl_b32 s{sT2}, s{sWAVE}, 8")
    a.I(f"s_cmp_lt_u32 s{sWAVE}, 5")
    a.I(f"s_cselect_b32 s{sT2}, s{sT2}, {OOB}")
    a.I(f"s_add_u32 s{sOO}, s{sOO}, s{sT2}")
    a.I(f"s_add_u32 s{sOX}, s{sOX}, s{sT2}")
    a.I(f"v_mul_u32_u24 v{vOOFF}, {8*1152}, v{vG}")
    a.I(f"v_lshl_add_u32 v{vOOFF}, v{vI}, 4, v{vOOFF}")
    a.I(f"v_lshrrev_b32 v{vT+3}, 1, v{vG}")
    a.I(f"v_lshlrev_b32 v{vT+3}, 3, v{vT+3}")
    a.I(f"v_and_b32 v{vT+4}, 1, v{vG}")
    a.I(f"v_add_u32 v{vT+3}, v{vT+3}, v{vT+4}")
    a.I(f"v_mul_u32_u24 v{vO4}, 1152, v{vT+3}")
    a.I(f"v_lshl_add_u32 v{vO4}, v{vI}, 4, v{vO4}")
    a.I(f"v_mul_u32_u24 v{vOX}, 1152, v{vT+4}")
    a.I(f"v_lshl_add_u32 v{vOX}, v{vI}, 4, v{vOX}")
    a.I(f"v_mov_b32 v{vT+3}, {OOB}")
    a.I(f"v_cmp_gt_u32 vcc, 32, v{vLANE}")
    a.I(f"v_cndmask_b32 v{vOX}, v{vT+3}, v{vOX}, vcc")
    a.I(f"s_cmp_eq_u32 s{sWAVE}, 4")
    a.I(f"s_cselect_b32 s{sT0}, 8, 16")
    a.I(f"v_cmp_gt_u32 vcc, s{sT0}, v{vI}")
    a.I(f"v_cndmask_b32 v{vOOFF}, v{vT+3}, v{vOOFF}, vcc")
    a.I(f"v_cndmask_b32 v{vO4}, v{vT+3}, v{vO4}, vcc")
    a.I(f"v_cndmask_b32 v{vOX}, v{vT+3}, v{vOX}, vcc")
    a.I(f"v_mul_u32_u24 v{vPA}, 40, v{vT+1}")
    a.I(f"v_add_lshl_u32 v{vPA}, v{vPA}, v{vG}, 2")
    a.I(f"v_add_u32 v{vPA}, {L_TA}, v{vPA}")
    a.I(f"s_mov_b32 s{sSCALE}, {f2h(128 ** -0.5):#x}")
    vm.wait("Q0")
    load_K(1)
    vm.wait("Q1")
    load_K(2)
    vm.wait("Q2")
    load_K(3)
    a.I("s_waitcnt lgkmcnt(0)")
    make_tag()
    a.I("s_barrier")
    stamp("B0")
    for k in range(3):
        a.I(f"ds_read_b32 v{vT+k}, v{vPQ} offset:{L_TX + k*128}")
    a.I(f"s_cmp_lt_u32 s{sWAVE}, 2")
    a.I(f"s_cselect_b32 s{sT0}, -1, 0")
    vm.wait("K0")
    load_K(4)
    a.I("s_waitcnt lgkmcnt(0)")
    a.I(f"v_and_b32 v{vT+2}, s{sT0}, v{vT+2}")
    for k in range(3):
        bb = vBA if k % 2 == 0 else vBB
        for r in range(4):
            a.I(f"v_and_b32 v{bb+r}, v{vT+k}, v{vM+r}")
        cc = "0" if k == 0 else f"v[{accQ}:{accQ+3}]"
        a.I(f"v_mfma_f32_16x16x32_bf16 v[{accQ}:{accQ+3}], v[{rQ+4*k}:{rQ+4*k+3}], v[{bb}:{bb+3}], {cc}")
    a.I(f"v_lshlrev_b32 v{vT+3}, 4, v{vTID}")
    a.I(f"ds_write_b128 v{vT+3}, v[{accQ}:{accQ+3}] offset:{L_RQ}")
    a.I("s_waitcnt lgkmcnt(0)")
    a.I("s_barrier")
    stamp("B1")
    for n in range(5, 8):
        vm.wait(f"K{n-4}")
        load_K(n)
        if P["qflag"] == f"K{n-4}": set_flag(0)
    for n in range(0, 4):
        vm.wait(f"K{n+4}")
        if n == 3: stamp("k7")
        load_V(n)
        if P["qflag"] == f"K{n+4}": set_flag(0)
    for n in range(0, 8, 2):
        a.I(f"ds_read2_b32 v[{vPGv+n}:{vPGv+n+1}], v{vPG} offset0:{n} offset1:{n+1}")
    a.I(f"ds_read_b32 v{vPGv+8}, v{vPG} offset:32")
    for n in range(4, 8):
        vm.wait(f"V{n-4}")
        load_V(n)
    stamp("v3")
    a.I("s_waitcnt lgkmcnt(0)")
    a.I("s_barrier")
    stamp("B3")
    a.I(f"v_lshrrev_b32 v{vT}, 3, v{vI}")
    a.I(f"v_lshlrev_b32 v{vT}, 8, v{vT}")
    a.I(f"v_and_b32 v{vT+1}, 3, v{vI}")
    a.I(f"v_lshl_add_u32 v{vT+1}, v{vG}, 2, v{vT+1}")
    a.I(f"v_lshl_add_u32 v{vT}, v{vT+1}, 4, v{vT}")
    QB = vT + 4
    a.I(f"ds_read_b128 v[{QB}:{QB+3}], v{vT} offset:{L_QL}")
    vm.wait("V4")
    load_G(0)
    a.I("s_waitcnt lgkmcnt(0)")
    for h in range(2):
        for n in range(4):
            k = 4 * h + n
            a.I(f"v_mfma_f32_16x16x32_bf16 v[{vD+4*n}:{vD+4*n+3}], v[{rA+4*k}:{rA+4*k+3}], v[{QB}:{QB+3}], 0")
        for n in range(4):
            a.I(f"v_mov_b32_dpp v{vS+4*h+n}, v{vD+4*n} quad_perm:[0,0,0,0] {DPPM}")
        for c in range(1, 4):
            for n in range(4):
                a.I(f"v_add_f32_dpp v{vS+4*h+n}, v{vD+4*n+c}, v{vS+4*h+n} quad_perm:[{c},{c},{c},{c}] {DPPM}")
    stamp("dpp")
    vm.wait("V5")
    load_G(1)
    stamp("g1")
    for n in range(0, 8, 2):
        a.I(f"v_cvt_pk_bf16_f32 v{vD+n}, v{vS+n}, v{vS+n+1}")
    for n in range(0, 8, 2):
        a.I(f"v_lshlrev_b32 v{vS+n}, 16, v{vD+n}")
        a.I(f"v_and_b32 v{vS+n+1}, 0xffff0000, v{vD+n}")
    for n in range(8):
        a.I(f"v_mul_f32 v{vS+n}, s{sSCALE}, v{vS+n}")
    for n in range(0, 8, 2):
        a.I(f"v_cvt_pk_bf16_f32 v{vD+n}, v{vS+n}, v{vS+n+1}")
    for n in range(0, 8, 2):
        a.I(f"v_lshlrev_b32 v{vS+n}, 16, v{vD+n}")
        a.I(f"v_and_b32 v{vS+n+1}, 0xffff0000, v{vD+n}")
    vMX, vLS = vT + 8, vT + 9
    assert vMX % 2 == 0
    a.I(f"v_max3_f32 v{vMX}, v{vS}, v{vS+1}, v{vS+2}")
    a.I(f"v_max3_f32 v{vT}, v{vS+3}, v{vS+4}, v{vS+5}")
    a.I(f"v_max3_f32 v{vMX}, v{vMX}, v{vS+6}, v{vS+7}")
    a.I(f"v_max_f32 v{vMX}, v{vMX}, v{vT}")
    xrow_reduce(a, "v_max_f32", vMX, vT)
    stamp("max")
    vm.wait("V6")
    load_G(2)
    stamp("g2")
    a.I(f"v_mul_f32 v{vT}, s{sL2E}, v{vMX}")
    for n in range(8):
        a.I(f"v_fma_f32 v{vS+n}, v{vS+n}, s{sL2E}, -v{vT}")
    for n in range(8):
        a.I(f"v_exp_f32 v{vS+n}, v{vS+n}")
    a.I(f"v_add_f32 v{vLS}, v{vS}, v{vS+1}")
    a.I(f"v_add_f32 v{vT}, v{vS+2}, v{vS+3}")
    a.I(f"v_add_f32 v{vT+1}, v{vS+4}, v{vS+5}")
    a.I(f"v_add_f32 v{vT+2}, v{vS+6}, v{vS+7}")
    for n in range(8):
        a.I(f"v_cvt_pk_bf16_f32 v{vS+n}, v{vS+n}, v{vS+n}")
    a.I(f"v_add_f32 v{vLS}, v{vLS}, v{vT}")
    a.I(f"v_add_f32 v{vT+1}, v{vT+1}, v{vT+2}")
    a.I(f"v_add_f32 v{vLS}, v{vLS}, v{vT+1}")
    for n in range(8):
        for r in range(4):
            a.I(f"v_and_b32 v{rA+4*n+r}, v{vS+n}, v{vM+r}")
        if n < 7:
            cc = "0" if n == 0 else f"v[{accO}:{accO+3}]"
            a.I(f"v_mfma_f32_16x16x32_bf16 v[{accO}:{accO+3}], v[{rB+4*n}:{rB+4*n+3}], v[{rA+4*n}:{rA+4*n+3}], {cc}")
    xrow_reduce(a, "v_add_f32", vLS, vT)
    a.I(f"v_lshrrev_b32 v{vT}, 3, v{vI}")
    a.I(f"v_lshlrev_b32 v{vT}, 3, v{vT}")
    a.I(f"v_lshl_add_u32 v{vT}, v{vWAVE}, 4, v{vT}")
    a.I(f"ds_write_b64 v{vT}, v[{vMX}:{vLS}] offset:{L_ML}")
    stamp("pv6")
    vm.wait("V7")
    stamp("v7")
    load_G(3)
    a.I(f"v_mfma_f32_16x16x32_bf16 v[{accO}:{accO+3}], v[{rB+28}:{rB+31}], v[{rA+28}:{rA+31}], v[{accO}:{accO+3}]")
    a.I(f"v_lshlrev_b32 v{vT+3}, 4, v{vTID}")
    a.I(f"ds_write_b128 v{vT+3}, v[{accO}:{accO+3}] offset:{L_RO}")
    a.I("s_waitcnt lgkmcnt(0)")
    a.I("s_barrier")
    stamp("B5")

    def g_mfma(n):
        bb = vBA if n % 2 == 0 else vBB
        for r in range(4):
            a.I(f"v_and_b32 v{bb+r}, v{vPGv+n}, v{vM+r}")
        cc = "0" if n == 0 else f"v[{accG}:{accG+3}]"
        a.I(f"v_mfma_f32_16x16x32_bf16 v[{accG}:{accG+3}], v[{regG(n)}:{regG(n)+3}], v[{bb}:{bb+3}], {cc}")

    for n in range(4, 9):
        vm.wait(f"G{n-4}")
        load_G(n)
        g_mfma(n - 4)
    on = 0
    for n in range(0, 4):
        vm.wait(f"G{n+5}")
        for _ in range(P["opre"][n]):
            load_O(on); on += 1
        g_mfma(n + 5)
    a.I(f"v_lshlrev_b32 v{vT+3}, 4, v{vTID}")
    a.I(f"ds_write_b128 v{vT+3}, v[{accG}:{accG+3}] offset:{L_RG}")
    a.I(f"s_mul_i32 s{sKV1}, s2, 4608")
    a.I(f"s_add_u32 s{sKV1}, s{sKV1}, {WS_FP}")
    a.I("s_waitcnt lgkmcnt(0)")
    a.I("s_barrier")
    stamp("B6")
    a.I("s_barrier")
    for _ in range(P["nmid"]):
        load_O(on); on += 1
    if P["gwait"] is not None:
        vm.wait(P["gwait"])
    a.I("s_barrier")
    stamp("B6c")
    a.I("s_barrier")
    while on < 9:
        load_O(on); on += 1
    a.I(f"v_cmp_gt_u32 vcc, 288, v{vTID}")
    a.I(f"s_mov_b64 s[{sM0}:{sM0+1}], vcc")
    a.I("s_barrier")
    stamp("B7s")
    for n in range(0, 8, 2):
        a.I(f"ds_read2_b32 v[{vPGv+n}:{vPGv+n+1}], v{vPA} offset0:{(L_TA >> 2) - (L_TA >> 2) + 4*n} offset1:{4*n+4}" if False else
            f"ds_read2_b32 v[{vPGv+n}:{vPGv+n+1}], v{vPA} offset0:{4*n} offset1:{4*n+4}")
    a.I(f"ds_read_b32 v{vPGv+8}, v{vPA} offset:128")
    for n in range(9):
        if n % 2 == 0:
            a.I(f"s_waitcnt lgkmcnt({max(4 - n // 2, 0)})")
        bb = vBA if n % 2 == 0 else vBB
        for r in range(4):
            a.I(f"v_and_b32 v{bb+r}, v{vPGv+n}, v{vM+r}")
        vm.wait(f"O{n}")
        cc = "0" if n == 0 else f"v[{accF}:{accF+3}]"
        a.I(f"v_mfma_f32_16x16x32_bf16 v[{accF}:{accF+3}], v[{regO(n)}:{regO(n)+3}], v[{bb}:{bb+3}], {cc}")
    stamp("B8")
    lbl = role("lt", 5)
    a.I(f"s_mov_b64 exec, s[{sM0}:{sM0+1}]")
    tagit(accF)
    a.I(f"buffer_store_dwordx4 v[{accF}:{accF+3}], v{vT+3}, s[{sWS}:{sWS+3}], s{sKV1} offen {P['fp_st']}")
    a.I("s_mov_b64 exec, -1")
    a.label(lbl)
    stamp("fpub")
    a.fence()
    a.I("s_cmp_ge_u32 s2, 36")
    a.I("s_cbranch_scc1 FIN")
    a.I(f"v_lshrrev_b32 v{vT}, 3, v{vTID}")
    a.I(f"v_mul_u32_u24 v{vT}, 4608, v{vT}")
    a.I(f"v_and_b32 v{vT+1}, 7, v{vTID}")
    a.I(f"v_lshl_add_u32 v{vT}, v{vT+1}, 4, v{vT}")
    a.I(f"s_lshl_b32 s{sT0}, s2, 7")
    a.I(f"s_add_u32 s{sT0}, s{sT0}, {WS_FP}")
    for k in range(1, 4):
        a.I(f"s_add_u32 s{sQO+k-1}, s{sT0}, {k*64*4608}")
    a.I(f"s_lshr_b32 s{sT1}, s2, 3")
    a.I(f"s_lshl_b32 s{sT1}, s{sT1}, 7")
    a.I(f"s_bfe_u32 s{sT2}, s2, 0x20001")
    a.I(f"s_lshl_b32 s{sT2}, s{sT2}, 5")
    a.I(f"s_add_u32 s{sT1}, s{sT1}, s{sT2}")
    a.I(f"s_and_b32 s{sT2}, s2, 1")
    a.I(f"s_mul_i32 s{sT2}, s{sT2}, 576")
    a.I(f"s_add_u32 s{sT1}, s{sT1}, s{sT2}")
    a.I(f"s_lshl_b32 s{sGO}, s{sT1}, 1")
    a.I(f"v_lshlrev_b32 v{vT+2}, 1, v{vTID}")
    a.I(f"v_mov_b32 v{vT+3}, {OOB}")
    a.I(f"v_cmp_gt_u32 vcc, 32, v{vTID}")
    a.I(f"v_cndmask_b32 v{vT+2}, v{vT+3}, v{vT+2}, vcc")
    a.I(f"buffer_load_ushort v{vT+7}, v{vT+2}, s[{sX}:{sX+3}], s{sGO} offen")
    so = [sT0, sQO, sQO + 1, sQO + 2]
    F = rA
    a.I(f"v_lshlrev_b32 v{vT+4}, 7, v{vWAVE}")
    a.I(f"v_lshl_add_u32 v{vT+4}, v{vT+1}, 4, v{vT+4}")
    a.I(f"v_bfe_u32 v{vT+5}, v{vLANE}, 3, 2")
    a.I(f"v_lshlrev_b32 v{vT+5}, 2, v{vT+5}")
    a.I(f"v_lshl_add_u32 v{vT+5}, v{vT+1}, 4, v{vT+5}")
    a.I(f"v_cmp_gt_u32 s[{sK}:{sK+1}], 8, v{vLANE}")
    for k in range(4):
        a.I(f"s_mov_b64 s[{sM0+2*k}:{sM0+2*k+1}], -1")
    a.I(f"s_mov_b32 s{sRETRY}, 0")
    def fg_issue():
        for k in range(4):
            a.I(f"s_or_b64 exec, s[{sM0+2*k}:{sM0+2*k+1}], 1")
            a.I(f"buffer_load_dwordx4 v[{F+4*k}:{F+4*k+3}], v{vT}, s[{sWS}:{sWS+3}], s{so[k]} offen {P['fp_ld']}")
    lr, ld = L("FG_TRY"), L("FG_OK")
    if P["fgpipe"]:
        fg_issue()
    a.fence()
    a.label(lr)
    fg_issue()
    a.I(f"s_waitcnt vmcnt({4 if P['fgpipe'] else 0})")
    for k in range(4):
        a.I(f"s_or_b64 exec, s[{sM0+2*k}:{sM0+2*k+1}], 1")
        check(F + 4 * k, vT + 8, vT + 9, sM0 + 2 * k)
    a.I("s_mov_b64 exec, -1")
    a.I(f"s_or_b64 vcc, s[{sM0}:{sM0+1}], s[{sM0+2}:{sM0+3}]")
    a.I(f"s_or_b64 s[{sV}:{sV+1}], s[{sM0+4}:{sM0+5}], s[{sM0+6}:{sM0+7}]")
    a.I(f"s_or_b64 vcc, vcc, s[{sV}:{sV+1}]")
    a.I("s_cmp_eq_u64 vcc, 0")
    a.I(f"s_cbranch_scc1 {ld}")
    if P["fgsleep"]:
        a.I(f"s_sleep {P['fgsleep']}")
    a.I(f"s_add_u32 s{sRETRY}, s{sRETRY}, 1")
    a.I(f"s_cmp_le_u32 s{sRETRY}, {SPIN_LIMIT}")
    a.I(f"s_cbranch_scc1 {lr}")
    a.label(ld)
    stamp("fg")
    F0 = F
    F = rB
    for c in range(16):
        a.I(f"v_and_b32 v{F+c}, s{sHI}, v{F0+c}")
    for r in range(4):
        a.I(f"v_add_f32 v{F+r}, v{F+r}, v{F+4+r}")
        a.I(f"v_add_f32 v{F+8+r}, v{F+8+r}, v{F+12+r}")
    for r in range(4):
        a.I(f"v_add_f32 v{F+r}, v{F+r}, v{F+8+r}")
    for r in range(4):
        a.I(f"v_add_f32_dpp v{F+r}, v{F+r}, v{F+r} row_ror:8 {DPPM}")
    for r in range(4):
        a.I(f"v_mov_b32 v{F+4+r}, v{F+r}")
    for r in range(4):
        a.I(f"v_permlane16_swap_b32 v{F+r}, v{F+4+r}")
    for r in range(4):
        a.I(f"v_add_f32 v{F+r}, v{F+r}, v{F+4+r}")
    for r in range(4):
        a.I(f"v_mov_b32 v{F+4+r}, v{F+r}")
    for r in range(4):
        a.I(f"v_permlane32_swap_b32 v{F+r}, v{F+4+r}")
    for r in range(4):
        a.I(f"v_add_f32 v{F+r}, v{F+r}, v{F+4+r}")
    a.I(f"s_mov_b64 exec, s[{sK}:{sK+1}]")
    a.I(f"ds_write_b128 v{vT+4}, v[{F}:{F+3}] offset:{L_RZ}")
    a.I("s_mov_b64 exec, -1")
    a.I(f"v_lshlrev_b32 v{vT+7}, 16, v{vT+7}")
    a.I("s_waitcnt lgkmcnt(0)")
    a.I("s_barrier")
    lbl = role("eq", 0)
    for w in range(8):
        a.I(f"ds_read_b32 v{F+w}, v{vT+5} offset:{L_RZ + w*128}")
    a.I("s_waitcnt lgkmcnt(4)")
    a.I(f"v_add_f32 v{F}, v{F}, v{F+1}")
    a.I(f"v_add_f32 v{F+2}, v{F+2}, v{F+3}")
    a.I(f"v_add_f32 v{F}, v{F}, v{vT+7}")
    a.I("s_waitcnt lgkmcnt(0)")
    a.I(f"v_add_f32 v{F+4}, v{F+4}, v{F+5}")
    a.I(f"v_add_f32 v{F+6}, v{F+6}, v{F+7}")
    a.I(f"v_add_f32 v{F}, v{F}, v{F+2}")
    a.I(f"v_add_f32 v{F+4}, v{F+4}, v{F+6}")
    a.I(f"v_add_f32 v{F}, v{F}, v{F+4}")
    a.I(f"v_cvt_pk_bf16_f32 v{F}, v{F}, v{F}")
    a.I(f"buffer_store_short v{F}, v{vT+2}, s[{sOUT}:{sOUT+3}], s{sGO} offen")
    a.I("s_cmp_eq_u32 s2, 0")
    sk = L("NOEP")
    a.I(f"s_cbranch_scc0 {sk}")
    a.I(f"s_add_u32 s{sE}, s{sE}, 1")
    a.I(f"v_mov_b32 v{vT+6}, s{sE}")
    a.I(f"v_mov_b32 v{vT+8}, {WS_EPOCH}")
    a.I(f"v_cmp_eq_u32 vcc, 0, v{vLANE}")
    a.I(f"s_and_saveexec_b64 s[{sM0}:{sM0+1}], vcc")
    a.I(f"buffer_store_dword v{vT+6}, v{vT+8}, s[{sWS}:{sWS+3}], 0 offen sc1")
    a.I(f"s_mov_b64 exec, s[{sM0}:{sM0+1}]")
    if P.get("selftime"):
        a.I("s_memrealtime s[96:97]")
        a.I("s_waitcnt lgkmcnt(0)")
        a.I("s_sub_u32 s100, s96, s98")
        a.I(f"s_mul_i32 s100, s100, {P['selftime']}")
        lw = L("SELF")
        a.label(lw)
        a.I("s_memrealtime s[88:89]")
        a.I("s_waitcnt lgkmcnt(0)")
        a.I("s_sub_u32 s90, s88, s96")
        a.I("s_cmp_lt_u32 s90, s100")
        a.I(f"s_cbranch_scc1 {lw}")
    a.label(sk)
    a.label(lbl)
    a.label("FIN_S")
    if diag:
        a.I(f"s_add_u32 s{sWAVE}, s{sWAVE}, 4")
    a.I("s_branch FIN2") if diag else None
    a.label("FIN")
    if diag:
        a.I(f"v_lshrrev_b32 v{vT}, 6, v{vTID}") if False else None
    a.label("FIN2")
    if P.get("startdbg"):
        a.I("s_waitcnt lgkmcnt(0)")
        a.I(f"s_load_dwordx2 s[{sDBG}:{sDBG+1}], s[0:1], {OFF['dbg']}")
        a.I(f"s_mov_b32 s{sDBG+2}, 64")
        a.I(f"s_mov_b32 s{sDBG+3}, 0x20000")
        a.I("s_waitcnt lgkmcnt(0)")
        a.I(f"s_lshl_b32 s{sT0}, s2, 2")
        a.I(f"v_mov_b32 v{vT}, s98")
        a.I(f"v_mov_b32 v{vT+1}, 0")
        a.I(f"v_cmp_eq_u32 vcc, 0, v{vLANE}")
        a.I(f"s_and_saveexec_b64 s[{sM0}:{sM0+1}], vcc")
        a.I(f"buffer_store_dword v{vT}, v{vT+1}, s[{sDBG}:{sDBG+3}], s{sT0} offen")
    if diag:
        stamp("end")
        a.I("s_waitcnt lgkmcnt(0)")
        a.fence()
        a.I(f"s_cmp_eq_u32 s19, {stampwave}")
        a.I("s_cbranch_scc0 END")
        for k in range(len(stamps)):
            a.I(f"v_writelane_b32 v{NVGPR-1}, s{STAMP_REGS[k]}, {k}")
        a.I(f"v_writelane_b32 v{NVGPR-1}, s98, 15")
        a.I(f"s_lshl_b32 s{sT0}, s2, 6")
        a.I(f"v_lshlrev_b32 v{vT}, 2, v{vLANE}")
        a.I(f"v_cmp_gt_u32 vcc, 16, v{vLANE}")
        a.I(f"s_and_saveexec_b64 s[{sM0}:{sM0+1}], vcc")
        a.I(f"buffer_store_dword v{NVGPR-1}, v{vT}, s[{sDBG}:{sDBG+3}], s{sT0} offen")
    a.label("END")
    a.I("s_endpgm")
    a.raw('.section .rodata,"a"')
    a.raw(kernel_desc(kn, NVGPR, 102))
    txt = a.text()
    if diag:
        txt = txt.replace(f"s_cmp_eq_u32 s19, {stampwave}", f"s_cmp_eq_u32 s3, {stampwave}")
        txt = txt.replace(f"    v_readfirstlane_b32 s{sWAVE}, v{vWAVE}\n", f"    v_readfirstlane_b32 s{sWAVE}, v{vWAVE}\n    v_readfirstlane_b32 s3, v{vWAVE}\n", 1)
    open(path, "w").write(txt)
    print("wrote", path, "insts", a.ninst, "nops", a.nops, "stamps", stamps)


if __name__ == "__main__":
    E = ["end"]
    D = dict(opre=(1, 1, 1, 1), nmid=2, gwait="O2")
    def B(n, **kw):
        gen(f"ba_{n}.s", diag=True, stampwave=4, stamp_sel=E, P=dict(D, **kw))
    gen("v8.s", P=D)
    B("a")
    B("b", hgpipe=False)
    B("c", hgpipe=False, fgpipe=False)
    B("d", gwait="O1")
    B("e", codepf="some")
    B("f", nmid=0, gwait="O1")
    B("g", gwait=None)
```

```python
import sys, math, struct
sys.path.insert(0, "gen")
from common import *

def f2h(x):
    return struct.unpack("<I", struct.pack("<f", x))[0]

WS_EPOCH = 0
WS_QP = 0x1000
WS_OP = 0x50000
WS_HP = 0xA0000
WS_FP = 0x140000
WS_SLOW = 0x400000
NFAST = 8
L_TX, L_TA, L_QL, L_ML, L_RZ = 0, 4608, 5120, 5632, 6144
L_FLAG = 5760
L_RQ, L_RO, L_RG, L_RF, L_RX = 8192, 24576, 32768, 40960, 81920
LDS_BYTES = 40960
OOB = 0x40000000
SPIN_LIMIT = 1 << 15

sX, sK, sV, sWQ, sWO, sWG, sWU, sWD, sOUT, sWS, sDBG, sGS, sOS = 4, 8, 12, 16, 20, 24, 28, 32, 36, 40, 44, 48, 52
sWAVE, sXC, sSG, sKVH, sJ, sB, sSPL, sCS, sFR, sKV0, sKV1 = 56, 57, 58, 59, 60, 61, 62, 63, 64, 65, 66
sT0, sT1, sT2 = 67, 68, 69
sTAG, sTB = 70, 71
sSEL01, sSEL23, sSCALE, sL2E, sE, sRETRY = 75, 76, 77, 78, 79, 80
sQO = 81
sGO, sOO, sOX, sHI = 84, 85, 86, 87
sM0 = 88

vTID, vLANE, vWAVE, vI, vG = 0, 1, 2, 3, 4
vKO, vVO, vQOFF, vGOFF, vOOFF, vO4, vOX = 5, 6, 7, 8, 9, 10, 11
vM = 12
vFF, vPQ, vPG, vPA = 16, 17, 18, 19
vBA, vBB = 20, 24
accO, accG, accF, accX = 28, 32, 36, 56
accQ = accX
vD = 36
vS = 60
vPGv = 68
vT = 78
rA, rB, rC = 88, 120, 152
NVGPR = 168


class VM:
    def __init__(self, a):
        self.a = a
        self.seq = []

    def issue(self, name, text, optional=False):
        self.a.I(text)
        if not optional:
            self.seq.append(name)

    def wait(self, name):
        n = len(self.seq) - 1 - self.seq.index(name)
        self.a.I(f"s_waitcnt vmcnt({n})")


def gen(path, diag=False, stamp_sel=None, stampwave=4, P=None):
    P = dict(dict(qflag="K5", prio=2, nib=3, tlb=False, tlb_wave=3, opre=(1, 1, 1, 1), nmid=2, gwait="O1", og_at="B6", nfast=16, codepf=None, fgpipe=True, fgsleep=0, fp_st="sc1", fp_ld="sc1", hgpipe=True, rot=None, gmap="stride9"), **(P or {}))
    a = Asm()
    a.raw(HEADER_COMMENTS.rstrip())
    a.raw(f"; @launch grid=(256,1,1) block=(768,1,1) lds={LDS_BYTES}")
    a.raw('.amdgcn_target "amdgcn-amd-amdhsa--gfx950"')
    a.raw(".text")
    kn = NAME + "_kernel"
    kernel_header(a, kn)
    stamps = []
    lab = [0]
    STAMP_REGS = [96, 100, 24, 26, 28, 30, 52, 54, 2000]

    def L(prefix):
        lab[0] += 1
        return f"{prefix}_{lab[0]}"

    def stamp(name):
        if diag and (stamp_sel is None or name in stamp_sel or name == "end"):
            if name in stamps:
                r = STAMP_REGS[stamps.index(name)]
            else:
                r = STAMP_REGS[len(stamps)]
                assert r < 200, "too many stamps"
                stamps.append(name)
            a.I(f"s_memrealtime s[{r}:{r+1}]")

    def role(op, n):
        lbl = L("SKIP")
        a.fence()
        a.I(f"s_cmp_{op}_u32 s{sWAVE}, {n}")
        a.I(f"s_cbranch_scc0 {lbl}")
        return lbl

    def tagit(r0):
        for c in range(4):
            a.I(f"v_bfi_b32 v{r0+c}, v{vFF}, s{sTB+c}, v{r0+c}")

    def untag(r0, n=4):
        for c in range(n):
            a.I(f"v_and_b32 v{r0+c}, s{sHI}, v{r0+c}")

    def check(r0, t0, t1, sdst):
        a.I(f"v_perm_b32 v{t0}, v{r0+1}, v{r0}, s{sSEL01}")
        a.I(f"v_perm_b32 v{t1}, v{r0+3}, v{r0+2}, s{sSEL23}")
        a.I(f"v_or_b32 v{t0}, v{t0}, v{t1}")
        a.I(f"v_cmp_ne_u32 s[{sdst}:{sdst+1}], s{sTAG}, v{t0}")

    def make_tag():
        a.I(f"s_mul_i32 s{sTAG}, s{sE}, 0x9E3779B1")
        a.I(f"s_add_u32 s{sTAG}, s{sTAG}, 0x7F4A7C15")
        for c in range(4):
            a.I(f"s_bfe_u32 s{sTB+c}, s{sTAG}, {(8 << 16) | (8*c):#x}")

    def wait_flag(off):
        lr = L("FLAGW")
        a.I(f"v_mov_b32 v{vT+8}, {L_FLAG + off}")
        a.I(f"s_mov_b32 s{sRETRY}, 0")
        a.fence()
        a.label(lr)
        a.I(f"ds_read_b32 v{vT+9}, v{vT+8}")
        a.I(f"s_add_u32 s{sRETRY}, s{sRETRY}, 1")
        a.I("s_waitcnt lgkmcnt(0)")
        a.I(f"v_readfirstlane_b32 s{sT2}, v{vT+9}")
        a.I(f"s_cmp_gt_u32 s{sRETRY}, {SPIN_LIMIT * 8}")
        a.I(f"s_cselect_b32 s{sT2}, 1, s{sT2}")
        a.I(f"s_cmp_eq_u32 s{sT2}, 0")
        a.I(f"s_cbranch_scc1 {lr}")

    def set_flag(off):
        lbl = role("eq", 0)
        a.I(f"v_mov_b32 v{vT+8}, {L_FLAG + off}")
        a.I(f"v_mov_b32 v{vT+9}, 1")
        a.I(f"ds_write_b32 v{vT+8}, v{vT+9}")
        a.label(lbl)

    sEFF = 83

    def gather_issue(mk, bases):
        for t in mk(bases):
            a.I(t)

    def gather_loop(name, mk, bases, checks, sleep, preissued=False, pipe=False):
        a.I(f"s_mov_b32 s{sRETRY}, 0")
        ld, lc = L(name + "_OK"), L(name + "_CHK")
        n = len(checks)
        if not preissued:
            for t in mk(bases):
                a.I(t)
        def reissue():
            a.I(f"s_add_u32 s{sRETRY}, s{sRETRY}, 1")
            a.I(f"s_and_b32 s{sT2}, s{sRETRY}, 1")
            a.I(f"s_cmp_ge_u32 s{sRETRY}, {P['nfast']}")
            a.I(f"s_cselect_b32 s{sT2}, s{sT2}, 0")
            a.I(f"s_mul_i32 s{sT2}, s{sT2}, {WS_SLOW}")
            effs = []
            for k, bs in enumerate(bases):
                a.I(f"s_add_u32 s{sEFF+k}, s{bs}, s{sT2}")
                effs.append(sEFF + k)
            for t in mk(effs):
                a.I(t)
        def checks_all(extra):
            first = True
            for k, r in enumerate(checks):
                a.I(f"s_waitcnt vmcnt({n - 1 - k + extra})")
                dst = sM0 if first else sM0 + 2
                check(r, vT + 8, vT + 9, dst)
                if not first:
                    a.I(f"s_or_b64 s[{sM0}:{sM0+1}], s[{sM0}:{sM0+1}], s[{sM0+2}:{sM0+3}]")
                first = False
            a.I(f"s_cmp_eq_u64 s[{sM0}:{sM0+1}], 0")
            a.I(f"s_cbranch_scc1 {ld}")
        if pipe:
            lp = L(name + "_PIPE")
            a.fence()
            a.label(lp)
            a.I(f"s_add_u32 s{sRETRY}, s{sRETRY}, 1")
            for t in mk(bases):
                a.I(t)
            checks_all(n)
            a.I(f"s_cmp_lt_u32 s{sRETRY}, {P['nfast'] - 1}")
            a.I(f"s_cbranch_scc1 {lp}")
        a.fence()
        a.label(lc)
        checks_all(0)
        if sleep:
            a.I(f"s_sleep {sleep}")
        a.I(f"s_cmp_gt_u32 s{sRETRY}, {SPIN_LIMIT}")
        a.I(f"s_cbranch_scc1 {ld}")
        reissue()
        a.I(f"s_branch {lc}")
        a.label(ld)
        if diag:
            slot = {"QG": 12, "OG": 13, "HG": 14}[name]
            a.I(f"v_writelane_b32 v{NVGPR-1}, s{sRETRY}, {slot}")

    def publish(r0, voff, soff, suffix=""):
        a.I(f"buffer_store_dwordx4 v[{r0}:{r0+3}], v{voff}, s[{sWS}:{sWS+3}], s{soff} offen {suffix}")
        a.I(f"s_add_u32 s{sT2}, s{soff}, {WS_SLOW}")
        a.I(f"buffer_store_dwordx4 v[{r0}:{r0+3}], v{voff}, s[{sWS}:{sWS+3}], s{sT2} offen {suffix} sc1")

    a.I("s_cmp_ge_u32 s2, 256")
    a.I("s_cbranch_scc1 END")
    ptrs = (("x", sX), ("wq", sWQ), ("k", sK), ("ws", sWS), ("v", sV), ("wg", sWG), ("wu", sWU), ("wo", sWO),
            ("wd", sWD), ("out", sOUT))
    for nm, r in ptrs:
        a.I(f"s_load_dwordx2 s[{r}:{r+1}], s[0:1], {OFF[nm]}")
    if diag:
        a.I(f"s_load_dwordx2 s[{sDBG}:{sDBG+1}], s[0:1], {OFF['dbg']}")
    if diag or P.get("selftime") or P.get("startdbg"):
        a.I("s_memrealtime s[98:99]")
    a.I(f"v_lshrrev_b32 v{vWAVE}, 6, v{vTID}")
    a.I(f"v_and_b32 v{vLANE}, 63, v{vTID}")
    a.I(f"v_readfirstlane_b32 s{sWAVE}, v{vWAVE}")
    for nm, r in ptrs:
        a.I(f"s_mov_b32 s{r+2}, {SIZE[nm]}")
        a.I(f"s_mov_b32 s{r+3}, 0x20000")
    if diag:
        a.I(f"s_mov_b32 s{sDBG+2}, {P.get('dbgsize', 65536)}")
        a.I(f"s_mov_b32 s{sDBG+3}, 0x20000")
    a.I(f"v_and_b32 v{vI}, 15, v{vLANE}")
    a.I(f"v_lshrrev_b32 v{vG}, 4, v{vLANE}")
    a.I(f"v_lshlrev_b32 v{vVO}, 4, v{vLANE}")
    a.I(f"s_and_b32 s{sXC}, s2, 7")
    a.I(f"s_lshr_b32 s{sSG}, s2, 3")
    a.I(f"s_lshr_b32 s{sT0}, s{sSG}, 4")
    a.I(f"s_lshl_b32 s{sKVH}, s{sXC}, 1")
    a.I(f"s_add_u32 s{sKVH}, s{sKVH}, s{sT0}")
    a.I(f"s_and_b32 s{sJ}, s{sSG}, 15")
    a.I(f"s_lshr_b32 s{sB}, s{sJ}, 3")
    a.I(f"s_and_b32 s{sSPL}, s{sJ}, 7")
    a.I(f"s_lshr_b32 s{sT0}, s{sSG}, 2")
    a.I(f"s_lshl_b32 s{sCS}, s{sXC}, 3")
    a.I(f"s_add_u32 s{sCS}, s{sCS}, s{sT0}")
    a.I(f"s_and_b32 s{sFR}, s{sSG}, 3")
    a.I(f"v_mov_b32 v{vFF}, 0xff")
    a.I(f"s_mov_b32 s{sHI}, 0xffffff00")
    a.I(f"s_mov_b32 s{sSEL01}, 0x0c0c0400")
    a.I(f"s_mov_b32 s{sSEL23}, 0x04000c0c")
    a.I(f"s_mov_b32 s{sL2E}, {f2h(math.log2(math.e)):#x}")
    a.I(f"s_cmp_ge_u32 s{sWAVE}, 4")
    a.I("s_cbranch_scc1 STREAM")

    if P["prio"]:
        a.I(f"s_setprio {P['prio']}")
    a.I(f"v_mov_b32 v{rC}, 0")
    a.I(f"v_lshlrev_b32 v{vT}, 1, v{vLANE}")
    a.I(f"s_mul_i32 s{sT1}, s{sWAVE}, 1152")
    a.I("s_waitcnt lgkmcnt(0)")
    a.I(f"s_load_dword s{sE}, s[{sWS}:{sWS+1}], {WS_EPOCH}")
    if P["codepf"]:
        lbl = role("eq", 3)
        if P["codepf"] == "some":
            a.I(f"s_cmp_lt_u32 s{sSG}, 4")
            a.I(f"s_cbranch_scc0 {lbl}")
        a.I(f"s_getpc_b64 s[{sM0}:{sM0+1}]")
        a.label("PFBASE")
        a.I(f"v_lshlrev_b32 v{rA}, 7, v{vLANE}")
        a.I(f"v_add_u32 v{rA+1}, 8192, v{rA}")
        a.I(f"global_load_dword v{rA+2}, v{rA}, s[{sM0}:{sM0+1}]")
        a.raw(f"    v_cmp_gt_u32 vcc, (END-PFBASE), v{rA+1}")
        a.I(f"s_and_saveexec_b64 s[{sM0+2}:{sM0+3}], vcc")
        a.I(f"global_load_dword v{rA+3}, v{rA+1}, s[{sM0}:{sM0+1}]")
        a.I(f"s_mov_b64 exec, s[{sM0+2}:{sM0+3}]")
        a.label(lbl)
    if P["tlb"]:
        lbl = role("eq", P["tlb_wave"])
        J = [81, 82, 83, 84, 85, 86, 65, 66, 48, 49, 50, 51, 52, 53]
        jn = [0]
        def touch(base, off_s=None, imm=0):
            d = J[jn[0]]; jn[0] += 1
            if off_s is None:
                a.I(f"s_load_dword s{d}, s[{base}:{base+1}], {imm}")
            else:
                a.I(f"s_load_dword s{d}, s[{base}:{base+1}], s{off_s}")
        a.I(f"s_lshl_b32 s{sT0}, s{sB}, 4")
        a.I(f"s_add_u32 s{sT0}, s{sT0}, s{sKVH}")
        a.I(f"s_lshl_b32 s{sT0}, s{sT0}, 21")
        a.I(f"s_add_u32 s{sT0}, s{sT0}, {6144*256}")
        touch(sK, sT0)
        touch(sV, sT0)
        a.I(f"s_mul_i32 s{sT0}, s{sFR}, {144*9216}")
        touch(sWG, sT0)
        touch(sWU, sT0)
        a.I(f"s_add_u32 s{sT0}, s{sT0}, {143*9216}")
        touch(sWG, sT0)
        touch(sWU, sT0)
        a.I(f"s_mul_i32 s{sT0}, s{sKVH}, {256*1152}")
        touch(sWO, sT0)
        a.I(f"s_add_u32 s{sT0}, s{sT0}, {255*1152}")
        touch(sWO, sT0)
        a.I(f"s_mul_i32 s{sT0}, s{sCS}, {72*1152}")
        touch(sWD, sT0)
        a.I(f"s_add_u32 s{sT0}, s{sT0}, {71*1152}")
        touch(sWD, sT0)
        a.I(f"s_mov_b32 s{sT0}, 0x200000")
        touch(sWS, sT0)
        touch(sOUT, None, 0)
        a.label(lbl)
    lbl = role("lt", 2)
    xr = rA
    for i in range(9):
        a.I(f"buffer_load_ushort v{xr+i}, v{vT}, s[{sX}:{sX+3}], s{sT1} offen offset:{i*128}")
    a.label(lbl)
    for _ in range(P["nib"]):
        a.I("s_barrier")
    lbl = role("lt", 2)
    a.I("s_waitcnt vmcnt(0)")
    stamp("xland")
    for i in range(9):
        a.I(f"v_lshlrev_b32 v{xr+i}, 16, v{xr+i}")
    a.I(f"v_add_f32 v{vT+1}, v{xr}, v{xr+1}")
    a.I(f"v_add_f32 v{vT+3}, v{xr+2}, v{xr+3}")
    a.I(f"v_add_f32 v{vT+4}, v{xr+4}, v{xr+5}")
    a.I(f"v_add_f32 v{vT+5}, v{xr+6}, v{xr+7}")
    a.I(f"v_add_f32 v{vT+1}, v{vT+1}, v{vT+3}")
    a.I(f"v_add_f32 v{vT+4}, v{vT+4}, v{vT+5}")
    a.I(f"v_add_f32 v{vT+1}, v{vT+1}, v{xr+8}")
    a.I(f"v_add_f32 v{vT+1}, v{vT+1}, v{vT+4}")
    allreduce64(a, "v_add_f32", vT + 1, vT + 2)
    a.I(f"v_mul_f32 v{vT+1}, {f2h(1/576):#x}, v{vT+1}")
    dv = rA + 16
    for i in range(9):
        a.I(f"v_sub_f32 v{dv+i}, v{xr+i}, v{vT+1}")
    a.I(f"v_mul_f32 v{vT+4}, v{dv}, v{dv}")
    a.I(f"v_mul_f32 v{vT+5}, v{dv+1}, v{dv+1}")
    for i in range(2, 9):
        a.I(f"v_fmac_f32 v{vT+4+(i%2)}, v{dv+i}, v{dv+i}")
    a.I(f"v_add_f32 v{vT+4}, v{vT+4}, v{vT+5}")
    round_bf16(a, vT + 1, vT + 1)
    for i in range(9):
        a.I(f"v_sub_f32 v{xr+i}, v{xr+i}, v{vT+1}")
    allreduce64(a, "v_add_f32", vT + 4, vT + 2)
    a.I(f"v_mul_f32 v{vT+4}, {f2h(1/576):#x}, v{vT+4}")
    round_bf16(a, vT + 4, vT + 4)
    a.I(f"v_add_f32 v{vT+4}, {f2h(1e-5):#x}, v{vT+4}")
    round_bf16(a, vT + 4, vT + 4)
    a.I(f"v_sqrt_f32 v{vT+4}, v{vT+4}")
    for i in range(9):
        a.I(f"v_cvt_pk_bf16_f32 v{xr+i}, v{xr+i}, v{xr+i}")
    round_bf16(a, vT + 4, vT + 4)
    a.I(f"v_rcp_f32 v{vT+5}, v{vT+4}")
    for i in range(9):
        a.I(f"v_and_b32 v{xr+i}, 0xffff0000, v{xr+i}")
    a.I(f"s_mul_i32 s{sT0}, s{sWAVE}, 2304")
    a.I(f"v_lshlrev_b32 v{vT+6}, 2, v{vLANE}")
    a.I(f"v_add_u32 v{vT+6}, s{sT0}, v{vT+6}")
    for i in range(9):
        a.I(f"v_mul_f32 v{xr+i}, v{xr+i}, v{vT+5}")
    for i in range(9):
        a.I(f"v_cvt_pk_bf16_f32 v{xr+i}, v{xr+i}, v{xr+i}")
        a.I(f"ds_write_b32 v{vT+6}, v{xr+i} offset:{L_TX + i*256}")
    a.I("s_waitcnt lgkmcnt(0)")
    a.label(lbl)
    lbl = role("eq", 2)
    a.I(f"v_lshlrev_b32 v{vT+8}, 2, v{vLANE}")
    a.I(f"v_mov_b32 v{vT+9}, 0")
    a.I(f"v_cmp_gt_u32 vcc, 8, v{vLANE}")
    a.I(f"s_and_saveexec_b64 s[{sM0}:{sM0+1}], vcc")
    a.I(f"ds_write_b32 v{vT+8}, v{vT+9} offset:{L_FLAG}")
    a.I(f"s_mov_b64 exec, s[{sM0}:{sM0+1}]")
    a.I("s_waitcnt lgkmcnt(0)")
    a.label(lbl)
    a.I("s_barrier")
    stamp("B0")
    a.I(f"v_lshrrev_b32 v{vT}, 5, v{vLANE}")
    a.I(f"v_lshlrev_b32 v{vT}, 13, v{vT}")
    a.I(f"v_bfe_u32 v{vT+1}, v{vLANE}, 3, 2")
    a.I(f"v_lshl_add_u32 v{vT}, v{vT+1}, 8, v{vT}")
    a.I(f"v_and_b32 v{vT+2}, 7, v{vLANE}")
    a.I(f"v_lshl_add_u32 v{vT}, v{vT+2}, 4, v{vT}")
    a.I(f"v_lshrrev_b32 v{vT+3}, 5, v{vLANE}")
    a.I(f"v_lshlrev_b32 v{vT+3}, 8, v{vT+3}")
    a.I(f"v_lshl_add_u32 v{vT+3}, v{vT+1}, 6, v{vT+3}")
    a.I(f"v_lshl_add_u32 v{vT+3}, v{vT+2}, 1, v{vT+3}")
    a.I("s_barrier")
    a.I("s_waitcnt vmcnt(0) lgkmcnt(0)")
    make_tag()
    lbl = role("eq", 0)
    for w in range(8):
        a.I(f"ds_read_b128 v[{rA+4*w}:{rA+4*w+3}], v{vVO} offset:{L_RQ + w*1024}")
    a.I(f"s_lshl_b32 s{sT0}, s{sKVH}, 4")
    a.I(f"s_add_u32 s{sT0}, s{sT0}, s{sJ}")
    a.I(f"s_lshl_b32 s{sT0}, s{sT0}, 10")
    a.I(f"s_add_u32 s{sT0}, s{sT0}, {WS_QP}")
    for w in range(1, 8):
        a.I(f"s_waitcnt lgkmcnt({7-w})")
        for r in range(4):
            a.I(f"v_add_f32 v{rA+r}, v{rA+r}, v{rA+4*w+r}")
    tagit(rA)
    publish(rA, vVO, sT0)
    stamp("qpub")
    a.label(lbl)
    lbl = role("eq", 2)
    a.I(f"s_lshl_b32 s{sT0}, s{sKVH}, 14")
    a.I(f"s_lshl_b32 s{sT1}, s{sB}, 7")
    a.I(f"s_add_u32 s{sT0}, s{sT0}, s{sT1}")
    a.I(f"s_add_u32 s{sT0}, s{sT0}, {WS_QP}")
    a.I(f"s_add_u32 s{sT1}, s{sT0}, 4096")
    if P["qflag"]:
        wait_flag(0)
    stamp("qflag")
    mkq = lambda so: [f"buffer_load_dwordx4 v[{rA+4*w}:{rA+4*w+3}], v{vT}, s[{sWS}:{sWS+3}], s{so[0] if w < 4 else so[1]} offen offset:{(w%4)*1024} sc1"
                      for w in range(8)]
    gather_loop("QG", mkq, [sT0, sT1], [rA + 4 * w for w in range(8)], P.get("qg_retry_sleep", 4))
    stamp("gq")
    untag(rA, 32)
    for w in range(1, 8):
        for r in range(4):
            a.I(f"v_add_f32 v{rA+r}, v{rA+r}, v{rA+4*w+r}")
    a.I(f"v_cvt_pk_bf16_f32 v{rA}, v{rA}, v{rA+1}")
    a.I(f"v_cvt_pk_bf16_f32 v{rA+2}, v{rA+2}, v{rA+3}")
    a.I(f"ds_write_b16 v{vT+3}, v{rA} offset:{L_QL}")
    a.I(f"ds_write_b16_d16_hi v{vT+3}, v{rA} offset:{L_QL+16}")
    a.I(f"ds_write_b16 v{vT+3}, v{rA+2} offset:{L_QL+32}")
    a.I(f"ds_write_b16_d16_hi v{vT+3}, v{rA+2} offset:{L_QL+48}")
    a.I("s_waitcnt lgkmcnt(0)")
    a.label(lbl)
    a.I("s_barrier")
    stamp("B3")
    a.I("s_barrier")
    lbl = role("eq", 1)
    for w in range(8):
        a.I(f"ds_read_b128 v[{rA+4*w}:{rA+4*w+3}], v{vVO} offset:{L_RO + w*1024}")
    a.I(f"v_lshrrev_b32 v{vT}, 3, v{vI}")
    a.I(f"v_lshlrev_b32 v{vT}, 3, v{vT}")
    ml = rB
    for w in range(8):
        a.I(f"ds_read_b64 v[{ml+2*w}:{ml+2*w+1}], v{vT} offset:{L_ML + w*16}")
    a.I(f"s_lshl_b32 s{sT0}, s{sB}, 4")
    a.I(f"s_add_u32 s{sT0}, s{sT0}, s{sKVH}")
    a.I(f"s_lshl_b32 s{sT0}, s{sT0}, 3")
    a.I(f"s_add_u32 s{sT0}, s{sT0}, s{sSPL}")
    a.I(f"s_mul_i32 s{sT0}, s{sT0}, 1152")
    a.I(f"s_add_u32 s{sT0}, s{sT0}, {WS_OP}")
    a.I("s_waitcnt lgkmcnt(0)")
    vMM = vT + 2
    a.I(f"v_max3_f32 v{vMM}, v{ml}, v{ml+2}, v{ml+4}")
    a.I(f"v_max3_f32 v{vMM}, v{vMM}, v{ml+6}, v{ml+8}")
    a.I(f"v_max3_f32 v{vMM}, v{vMM}, v{ml+10}, v{ml+12}")
    a.I(f"v_max_f32 v{vMM}, v{vMM}, v{ml+14}")
    for w in range(8):
        a.I(f"v_sub_f32 v{ml+2*w}, v{ml+2*w}, v{vMM}")
    for w in range(8):
        a.I(f"v_mul_f32 v{ml+2*w}, s{sL2E}, v{ml+2*w}")
    for w in range(8):
        a.I(f"v_exp_f32 v{ml+2*w}, v{ml+2*w}")
    og, mg = rC, rC + 4
    for r in range(4):
        a.I(f"v_mul_f32 v{og+r}, v{rA+r}, v{ml}")
    a.I(f"v_mul_f32 v{mg+1}, v{ml+1}, v{ml}")
    for w in range(1, 8):
        for r in range(4):
            a.I(f"v_fmac_f32 v{og+r}, v{rA+4*w+r}, v{ml+2*w}")
        a.I(f"v_fmac_f32 v{mg+1}, v{ml+2*w+1}, v{ml+2*w}")
    a.I(f"v_mov_b32 v{mg}, v{vMM}")
    a.I(f"v_mov_b32 v{mg+2}, 0")
    a.I(f"v_mov_b32 v{mg+3}, 0")
    tagit(og)
    tagit(mg)
    publish(og, vVO, sT0)
    a.I(f"v_lshlrev_b32 v{vT}, 1, v{vT}")
    a.I(f"v_and_b32 v{vT+1}, 0x37, v{vLANE}")
    a.I(f"v_cmp_eq_u32 vcc, 0, v{vT+1}")
    a.I(f"s_and_saveexec_b64 s[{sM0}:{sM0+1}], vcc")
    publish(mg, vT, sT0, "offset:1024")
    a.I(f"s_mov_b64 exec, s[{sM0}:{sM0+1}]")
    stamp("opub")
    a.label(lbl)
    vHA, vHT, sHA = rC, rC + 1, sQO
    lbl = role("eq", 0)
    a.I(f"v_lshrrev_b32 v{vT}, 2, v{vLANE}")
    a.I(f"v_lshrrev_b32 v{vT+1}, 3, v{vT}")
    a.I(f"v_and_b32 v{vT+2}, 7, v{vT}")
    a.I(f"v_lshl_add_u32 v{vT+2}, v{vT+1}, 7, v{vT+2}")
    a.I(f"v_mul_u32_u24 v{vT+2}, 1152, v{vT+2}")
    a.I(f"s_lshl_b32 s{sT0}, s{sKVH}, 3")
    a.I(f"s_mul_i32 s{sT0}, s{sT0}, 1152")
    a.I(f"s_add_u32 s{sT0}, s{sT0}, {WS_OP}")
    a.I(f"s_lshl_b32 s{sT1}, s{sB}, 4")
    a.I(f"v_add_u32 v{vT+3}, s{sT1}, v{vT+2}")
    a.I(f"s_lshl_b32 s{sT1}, s{sB}, 3")
    a.I(f"s_add_u32 s{sT1}, s{sT1}, s{sSPL}")
    a.I(f"s_lshl_b32 s{sT1}, s{sT1}, 4")
    a.I(f"v_and_b32 v{vT+4}, 3, v{vLANE}")
    a.I(f"v_lshl_add_u32 v{vT+2}, v{vT+4}, 8, v{vT+2}")
    a.I(f"v_add_u32 v{vT+2}, s{sT1}, v{vT+2}")
    a.label(lbl)
    lbl = role("eq", 3)
    a.I(f"v_lshrrev_b32 v{vHA}, 5, v{vLANE}")
    a.I(f"v_lshlrev_b32 v{vHA}, 11, v{vHA}")
    a.I(f"v_bfe_u32 v{vT+1}, v{vLANE}, 4, 1")
    a.I(f"v_lshl_add_u32 v{vHA}, v{vT+1}, 10, v{vHA}")
    a.I(f"v_bfe_u32 v{vT+1}, v{vLANE}, 2, 2")
    a.I(f"v_lshl_add_u32 v{vHA}, v{vT+1}, 8, v{vHA}")
    a.I(f"v_bfe_u32 v{vT+2}, v{vLANE}, 1, 1")
    a.I(f"v_lshl_add_u32 v{vHA}, v{vT+2}, 7, v{vHA}")
    a.I(f"v_and_b32 v{vT+3}, 1, v{vLANE}")
    a.I(f"v_lshl_add_u32 v{vHA}, v{vT+3}, 4, v{vHA}")
    a.I(f"s_lshl_b32 s{sHA}, s{sCS}, 13")
    a.I(f"s_lshl_b32 s{sT1}, s{sFR}, 5")
    a.I(f"s_add_u32 s{sHA}, s{sHA}, s{sT1}")
    a.I(f"s_add_u32 s{sHA}, s{sHA}, {WS_HP}")
    a.I(f"s_add_u32 s{sHA+1}, s{sHA}, 4096")
    a.I(f"v_mul_u32_u24 v{vHT}, 160, v{vT+2}")
    a.I(f"v_lshl_add_u32 v{vHT}, v{vT+1}, 5, v{vHT}")
    a.I(f"v_lshl_add_u32 v{vHT}, v{vT+3}, 2, v{vHT}")
    a.label(lbl)
    OG, MG = rA, rA + 4
    H0, H1 = rB, rB + 4
    mko = lambda so: [f"buffer_load_dwordx4 v[{OG}:{OG+3}], v{vT+2}, s[{sWS}:{sWS+3}], s{so[0]} offen sc1",
                      f"buffer_load_dwordx4 v[{MG}:{MG+3}], v{vT+3}, s[{sWS}:{sWS+3}], s{so[0]} offen offset:1024 sc1"]
    mkh = lambda so: [f"buffer_load_dwordx4 v[{H0}:{H0+3}], v{vHA}, s[{sWS}:{sWS+3}], s{so[0]} offen sc1",
                      f"buffer_load_dwordx4 v[{H0+4}:{H0+7}], v{vHA}, s[{sWS}:{sWS+3}], s{so[1]} offen sc1"]
    a.I("s_barrier")
    if P["og_at"] == "B6":
        lbl = role("eq", 0)
        gather_issue(mko, [sT0])
        a.label(lbl)
    lbl = role("ge", 2)
    a.I(f"s_sub_u32 s{sT1}, s{sWAVE}, 2")
    a.I(f"s_lshl_b32 s{sT2}, s{sT1}, 12")
    a.I(f"v_add_u32 v{vT}, s{sT2}, v{vVO}")
    for w in range(4):
        a.I(f"ds_read_b128 v[{rA+4*w}:{rA+4*w+3}], v{vT} offset:{L_RG + w*1024}")
    a.I(f"s_lshl_b32 s{sT0}, s{sCS}, 2")
    a.I(f"s_add_u32 s{sT0}, s{sT0}, s{sFR}")
    a.I(f"s_lshl_b32 s{sT0}, s{sT0}, 11")
    a.I(f"s_lshl_b32 s{sT1}, s{sT1}, 10")
    a.I(f"s_add_u32 s{sT0}, s{sT0}, s{sT1}")
    a.I(f"s_add_u32 s{sT0}, s{sT0}, {WS_HP}")
    for w in range(1, 4):
        a.I(f"s_waitcnt lgkmcnt({3-w})")
        for r in range(4):
            a.I(f"v_add_f32 v{rA+r}, v{rA+r}, v{rA+4*w+r}")
    tagit(rA)
    publish(rA, vVO, sT0)
    stamp("hpub")
    a.label(lbl)
    a.I("s_barrier")
    if P["og_at"] == "B6b":
        lbl = role("eq", 0)
        gather_issue(mko, [sT0])
        a.label(lbl)
    lbl = role("eq", 3)
    a.I(f"v_cmp_gt_u32 vcc, 12, v{vI}")
    a.I(f"s_and_saveexec_b64 s[{sM0+4}:{sM0+5}], vcc")
    a.I("s_barrier")
    gather_issue(mkh, [sHA, sHA + 1])
    stamp("hflag")
    a.I("s_barrier")
    lo = L("H3J")
    a.I(f"s_branch {lo}")
    a.label(lbl)
    a.I("s_barrier")
    if P["og_at"] == "B6c":
        lbl = role("eq", 0)
        gather_issue(mko, [sT0])
        a.label(lbl)
    a.I("s_barrier")
    a.label(lo)
    lbl = role("eq", 0)
    gather_loop("OG", mko, [sT0], [OG, MG], P.get("og_retry_sleep", 0), preissued=True)
    stamp("og")
    untag(OG)
    untag(MG, 2)
    a.I(f"v_mov_b32 v{vT+5}, v{MG}")
    a.I(f"v_max_f32_dpp v{vT+5}, v{vT+5}, v{vT+5} row_ror:4 {DPPM}")
    a.I(f"v_max_f32_dpp v{vT+5}, v{vT+5}, v{vT+5} row_ror:8 {DPPM}")
    a.I(f"v_mov_b32 v{vT+6}, v{vT+5}")
    a.I(f"v_permlane16_swap_b32 v{vT+5}, v{vT+6}")
    a.I(f"v_max_f32 v{vT+5}, v{vT+5}, v{vT+6}")
    a.I(f"v_sub_f32 v{vT+6}, v{MG}, v{vT+5}")
    a.I(f"v_mul_f32 v{vT+6}, s{sL2E}, v{vT+6}")
    a.I(f"v_exp_f32 v{vT+6}, v{vT+6}")
    vals = [OG, OG + 1, OG + 2, OG + 3, MG + 1]
    for r in vals:
        a.I(f"v_mul_f32 v{r}, v{r}, v{vT+6}")
    for r in vals:
        a.I(f"v_add_f32_dpp v{r}, v{r}, v{r} row_ror:4 {DPPM}")
    for r in vals:
        a.I(f"v_add_f32_dpp v{r}, v{r}, v{r} row_ror:8 {DPPM}")
    for k, r in enumerate(vals):
        a.I(f"v_mov_b32 v{rA+8+k}, v{r}")
    for k, r in enumerate(vals):
        a.I(f"v_permlane16_swap_b32 v{r}, v{rA+8+k}")
    for k, r in enumerate(vals):
        a.I(f"v_add_f32 v{r}, v{r}, v{rA+8+k}")
    a.I(f"v_rcp_f32 v{MG+1}, v{MG+1}")
    for r in range(4):
        a.I(f"v_mul_f32 v{OG+r}, v{OG+r}, v{MG+1}")
    for r in range(4):
        a.I(f"v_cvt_pk_bf16_f32 v{OG+r}, v{OG+r}, v{OG+r}")
    a.I(f"v_lshrrev_b32 v{vT}, 5, v{vLANE}")
    a.I(f"v_mul_u32_u24 v{vT}, 160, v{vT}")
    a.I(f"v_lshl_add_u32 v{vT}, v{vT+4}, 4, v{vT}")
    a.I(f"v_and_b32 v{vT+1}, 0x1c, v{vLANE}")
    a.I(f"v_cmp_eq_u32 vcc, 0, v{vT+1}")
    a.I(f"s_and_saveexec_b64 s[{sM0}:{sM0+1}], vcc")
    a.I(f"ds_write_b128 v{vT}, v[{OG}:{OG+3}] offset:{L_TA}")
    a.I(f"s_mov_b64 exec, s[{sM0}:{sM0+1}]")
    a.label(lbl)
    lbl = role("eq", 3)
    gather_loop("HG", mkh, [sHA, sHA + 1], [H0, H1], P.get("hg_retry_sleep", 0), preissued=True, pipe=P["hgpipe"])
    stamp("hg")
    a.I(f"s_mov_b64 exec, s[{sM0+4}:{sM0+5}]")
    for c in range(8):
        a.I(f"v_and_b32 v{rB+8+c}, s{sHI}, v{H0+c}")
    H0, H1 = rB + 8, rB + 12
    for r in range(4):
        a.I(f"v_add_f32 v{H0+r}, v{H0+r}, v{H1+r}")
    for r in range(4):
        a.I(f"v_mov_b32 v{H1+r}, v{H0+r}")
    for r in range(4):
        a.I(f"v_permlane32_swap_b32 v{H0+r}, v{H1+r}")
    for r in range(4):
        a.I(f"v_add_f32 v{H0+r}, v{H0+r}, v{H1+r}")
    for r in range(4):
        a.I(f"v_mov_b32 v{H1+r}, v{H0+r}")
    for r in range(4):
        a.I(f"v_permlane16_swap_b32 v{H0+r}, v{H1+r}")
    for r in range(4):
        a.I(f"v_cvt_pk_bf16_f32 v{H0+r}, v{H0+r}, v{H1+r}")
    for r in range(4):
        a.I(f"v_lshlrev_b32 v{H1+r}, 16, v{H0+r}")
        a.I(f"v_and_b32 v{H0+r}, 0xffff0000, v{H0+r}")
    for r in range(4):
        a.I(f"v_max_f32 v{H1+r}, 0, v{H1+r}")
    for r in range(4):
        a.I(f"v_mul_f32 v{H0+r}, v{H0+r}, v{H1+r}")
    for r in range(4):
        a.I(f"v_cvt_pk_bf16_f32 v{H0+r}, v{H0+r}, v{H0+r}")
    a.I(f"v_cmp_gt_u32 vcc, 12, v{vLANE}")
    a.I(f"s_and_saveexec_b64 s[{sM0}:{sM0+1}], vcc")
    for r in range(4):
        a.I(f"ds_write_b32 v{vHT}, v{H0+r} offset:{L_TA + 64 + r*8}")
    a.I(f"s_mov_b64 exec, s[{sM0}:{sM0+1}]")
    a.label(lbl)
    a.I("s_waitcnt lgkmcnt(0)")
    a.I("s_barrier")
    stamp("B7")
    a.I("s_branch FIN")

    a.hist = []
    a.label("STREAM")
    vm = VM(a)
    a.I(f"s_sub_u32 s{sWAVE}, s{sWAVE}, 4")
    a.I(f"v_subrev_u32 v{vWAVE}, 4, v{vWAVE}")
    a.I(f"v_subrev_u32 v{vTID}, 256, v{vTID}")
    a.I(f"v_lshlrev_b32 v{vQOFF}, 13, v{vG}")
    a.I(f"v_lshl_add_u32 v{vQOFF}, v{vI}, 4, v{vQOFF}")
    a.I(f"s_mul_i32 s{sQO}, s{sSPL}, 72")
    a.I(f"s_lshl_b32 s{sT0}, s{sWAVE}, 2")
    a.I(f"s_add_u32 s{sQO}, s{sQO}, s{sT0}")
    a.I(f"s_lshl_b32 s{sT2}, s{sQO}, 2")
    a.I(f"s_lshl_b32 s{sQO}, s{sQO}, 13")
    a.I(f"s_lshl_b32 s{sT0}, s{sKVH}, 1")
    a.I(f"s_add_u32 s{sT0}, s{sT0}, s{sB}")
    a.I(f"s_lshl_b32 s{sT0}, s{sT0}, 8")
    a.I(f"s_add_u32 s{sQO}, s{sQO}, s{sT0}")
    a.I(f"s_add_u32 s{sQO+1}, s{sQO}, {32*8192}")
    a.I(f"s_add_u32 s{sQO+2}, s{sQO}, {64*8192}")
    a.I(f"s_cmp_lt_u32 s{sWAVE}, 2")
    a.I(f"s_cselect_b32 s{sQO+2}, s{sQO+2}, {OOB}")
    a.I(f"s_lshl_b32 s{sKV0}, s{sB}, 4")
    a.I(f"s_add_u32 s{sKV0}, s{sKV0}, s{sKVH}")
    a.I(f"s_lshl_b32 s{sKV0}, s{sKV0}, 21")
    a.I(f"s_lshl_b32 s{sT0}, s{sSPL}, 10")
    a.I(f"s_add_u32 s{sKV0}, s{sKV0}, s{sT0}")
    a.I(f"s_lshl_b32 s{sT0}, s{sWAVE}, 13")
    a.I(f"s_add_u32 s{sKV0}, s{sKV0}, s{sT0}")
    a.I(f"s_add_u32 s{sKV0}, s{sKV0}, {6144*256}")
    sROT = sOS
    if P["rot"] == "pair":
        a.I(f"s_lshl_b32 s{sROT}, s{sB}, 2")
        a.I(f"s_add_u32 s{sROT}, s{sROT}, s{sKVH}")
    elif P["rot"] == "kvh":
        a.I(f"s_mov_b32 s{sROT}, s{sKVH}")
    elif P["rot"] == "half":
        a.I(f"s_lshr_b32 s{sROT}, s{sKVH}, 1")
        a.I(f"s_lshl_b32 s{sT0}, s{sB}, 2")
        a.I(f"s_add_u32 s{sROT}, s{sROT}, s{sT0}")
    a.I(f"v_lshrrev_b32 v{vKO}, 2, v{vI}")
    a.I(f"v_lshlrev_b32 v{vKO}, 8, v{vKO}")
    a.I(f"v_and_b32 v{vT+1}, 3, v{vI}")
    a.I(f"v_lshl_add_u32 v{vT+1}, v{vG}, 2, v{vT+1}")
    a.I(f"v_lshl_add_u32 v{vKO}, v{vT+1}, 4, v{vKO}")
    a.I("s_waitcnt lgkmcnt(0)")
    a.I(f"s_load_dword s{sE}, s[{sWS}:{sWS+1}], {WS_EPOCH}")

    rQ = rB
    def load_Q(k):
        vm.issue(f"Q{k}", f"buffer_load_dwordx4 v[{rQ+4*k}:{rQ+4*k+3}], v{vQOFF}, s[{sWQ}:{sWQ+3}], s{sQO+k} offen nt")
    def kv_off(n):
        if P["rot"]:
            a.I(f"s_add_u32 s{sKV1}, s{sROT}, {n}")
            a.I(f"s_and_b32 s{sKV1}, s{sKV1}, 7")
            a.I(f"s_lshl_b32 s{sKV1}, s{sKV1}, 16")
            a.I(f"s_add_u32 s{sKV1}, s{sKV1}, s{sKV0}")
            return sKV1
        if n:
            a.I(f"s_add_u32 s{sKV1}, s{sKV0}, {n*65536}")
            return sKV1
        return sKV0
    def load_K(n):
        so = kv_off(n)
        vm.issue(f"K{n}", f"buffer_load_dwordx4 v[{rA+4*n}:{rA+4*n+3}], v{vKO}, s[{sK}:{sK+3}], s{so} offen nt")
    def load_V(n):
        so = kv_off(n)
        vm.issue(f"V{n}", f"buffer_load_dwordx4 v[{rB+4*n}:{rB+4*n+3}], v{vVO}, s[{sV}:{sV+3}], s{so} offen nt")
    def regG(n):
        return rC + 4 * n if n < 4 else rB + 4 * (n - 4)
    def load_G(n):
        if n > 0:
            a.I(f"s_add_u32 s{sGO}, s{sGO}, {9216 if P['gmap'] == 'stride9' else 16*9216}")
        vm.issue(f"G{n}", f"buffer_load_dwordx4 v[{regG(n)}:{regG(n)+3}], v{vGOFF}, s[{sGS}:{sGS+3}], s{sGO} offen")
    def regO(n):
        return rA + 4 * n if n < 8 else rC
    def load_O(n):
        r = regO(n)
        if n < 4:
            if n: a.I(f"s_add_u32 s{sOO}, s{sOO}, {32*1152}")
            vm.issue(f"O{n}", f"buffer_load_dwordx4 v[{r}:{r+3}], v{vOOFF}, s[{sWO}:{sWO+3}], s{sOO} offen nt")
        elif n < 8:
            if n > 4: a.I(f"s_add_u32 s{sOX}, s{sOX}, {16*1152}")
            vm.issue(f"O{n}", f"buffer_load_dwordx4 v[{r}:{r+3}], v{vO4}, s[{sWD}:{sWD+3}], s{sOX} offen nt")
        else:
            a.I(f"s_add_u32 s{sOX}, s{sOX}, {16*1152}")
            vm.issue(f"O{n}", f"buffer_load_dwordx4 v[{r}:{r+3}], v{vOX}, s[{sWD}:{sWD+3}], s{sOX} offen nt")

    if P.get("xfirst", True):
        pass
    nib = [0]
    def ibar():
        if nib[0] < P["nib"]:
            a.I("s_barrier")
            nib[0] += 1
    load_Q(0)
    a.I(f"v_and_b32 v{vT+1}, 1, v{vI}")
    a.I(f"v_mov_b32 v{vT+2}, 0xffff")
    a.I(f"v_mov_b32 v{vT+3}, 0xffff0000")
    a.I(f"v_cmp_eq_u32 vcc, 1, v{vT+1}")
    a.I(f"v_cndmask_b32 v{vT+2}, v{vT+2}, v{vT+3}, vcc")
    a.I(f"v_bfe_u32 v{vT+1}, v{vI}, 1, 2")
    for r in range(4):
        a.I(f"v_cmp_eq_u32 vcc, {r}, v{vT+1}")
        a.I(f"v_cndmask_b32 v{vM+r}, 0, v{vT+2}, vcc")
    ibar()
    load_Q(1)
    a.I(f"v_lshrrev_b32 v{vT+1}, 3, v{vI}")
    a.I(f"v_mul_u32_u24 v{vT+2}, 576, v{vT+1}")
    a.I(f"v_add_lshl_u32 v{vT+2}, v{vT+2}, v{vG}, 2")
    a.I(f"v_add_u32 v{vPQ}, s{sT2}, v{vT+2}")
    g9 = P["gmap"] == "stride9"
    a.I(f"s_and_b32 s{sT0}, s{sWAVE}, 3")
    a.I(f"s_mul_i32 s{sT0}, s{sT0}, {36 if g9 else 4}")
    a.I(f"s_mul_i32 s{sT1}, s{sFR}, 144")
    a.I(f"s_add_u32 s{sT0}, s{sT0}, s{sT1}")
    a.I(f"s_mul_i32 s{sGO}, s{sT0}, 9216")
    a.I(f"s_mul_i32 s{sT1}, s{sCS}, 144")
    a.I(f"s_add_u32 s{sGO}, s{sGO}, s{sT1}")
    a.I(f"s_lshl_b32 s{sT0}, s{sT0}, 2")
    a.I(f"v_mul_u32_u24 v{vT+2}, 576, v{vT+1}")
    a.I(f"v_mul_u32_u24 v{vT+3}, {9 if g9 else 1}, v{vG}")
    a.I(f"v_add_lshl_u32 v{vT+2}, v{vT+2}, v{vT+3}, 2")
    a.I(f"v_add_u32 v{vPG}, s{sT0}, v{vT+2}")
    ibar()
    load_Q(2)
    a.I(f"v_mul_u32_u24 v{vGOFF}, {(9 if g9 else 1)*9216}, v{vG}")
    a.I(f"v_lshl_add_u32 v{vGOFF}, v{vI}, 4, v{vGOFF}")
    a.I(f"v_mov_b32 v{vT+3}, {OOB}")
    a.I(f"v_cmp_gt_u32 vcc, 9, v{vI}")
    a.I(f"v_cndmask_b32 v{vGOFF}, v{vT+3}, v{vGOFF}, vcc")
    a.I(f"s_cmp_ge_u32 s{sWAVE}, 4")
    for c in range(4):
        a.I(f"s_cselect_b32 s{sGS+c}, s{sWU+c}, s{sWG+c}")
    ibar()
    load_K(0)
    assert nib[0] == P["nib"], (nib, P["nib"])
    a.I(f"s_lshl_b32 s{sT0}, s{sKVH}, 8")
    a.I(f"s_lshl_b32 s{sT1}, s{sB}, 7")
    a.I(f"s_add_u32 s{sT0}, s{sT0}, s{sT1}")
    a.I(f"s_add_u32 s{sT0}, s{sT0}, s{sSPL}")
    a.I(f"s_mul_i32 s{sOO}, s{sT0}, 1152")
    a.I(f"s_mul_i32 s{sT1}, s{sCS}, 72")
    a.I(f"s_lshl_b32 s{sT2}, s{sFR}, 1")
    a.I(f"s_add_u32 s{sT1}, s{sT1}, s{sT2}")
    a.I(f"s_mul_i32 s{sOX}, s{sT1}, 1152")
    a.I(f"s_lshl_b32 s{sT2}, s{sWAVE}, 8")
    a.I(f"s_cmp_lt_u32 s{sWAVE}, 5")
    a.I(f"s_cselect_b32 s{sT2}, s{sT2}, {OOB}")
    a.I(f"s_add_u32 s{sOO}, s{sOO}, s{sT2}")
    a.I(f"s_add_u32 s{sOX}, s{sOX}, s{sT2}")
    a.I(f"v_mul_u32_u24 v{vOOFF}, {8*1152}, v{vG}")
    a.I(f"v_lshl_add_u32 v{vOOFF}, v{vI}, 4, v{vOOFF}")
    a.I(f"v_lshrrev_b32 v{vT+3}, 1, v{vG}")
    a.I(f"v_lshlrev_b32 v{vT+3}, 3, v{vT+3}")
    a.I(f"v_and_b32 v{vT+4}, 1, v{vG}")
    a.I(f"v_add_u32 v{vT+3}, v{vT+3}, v{vT+4}")
    a.I(f"v_mul_u32_u24 v{vO4}, 1152, v{vT+3}")
    a.I(f"v_lshl_add_u32 v{vO4}, v{vI}, 4, v{vO4}")
    a.I(f"v_mul_u32_u24 v{vOX}, 1152, v{vT+4}")
    a.I(f"v_lshl_add_u32 v{vOX}, v{vI}, 4, v{vOX}")
    a.I(f"v_mov_b32 v{vT+3}, {OOB}")
    a.I(f"v_cmp_gt_u32 vcc, 32, v{vLANE}")
    a.I(f"v_cndmask_b32 v{vOX}, v{vT+3}, v{vOX}, vcc")
    a.I(f"s_cmp_eq_u32 s{sWAVE}, 4")
    a.I(f"s_cselect_b32 s{sT0}, 8, 16")
    a.I(f"v_cmp_gt_u32 vcc, s{sT0}, v{vI}")
    a.I(f"v_cndmask_b32 v{vOOFF}, v{vT+3}, v{vOOFF}, vcc")
    a.I(f"v_cndmask_b32 v{vO4}, v{vT+3}, v{vO4}, vcc")
    a.I(f"v_cndmask_b32 v{vOX}, v{vT+3}, v{vOX}, vcc")
    a.I(f"v_mul_u32_u24 v{vPA}, 40, v{vT+1}")
    a.I(f"v_add_lshl_u32 v{vPA}, v{vPA}, v{vG}, 2")
    a.I(f"v_add_u32 v{vPA}, {L_TA}, v{vPA}")
    a.I(f"s_mov_b32 s{sSCALE}, {f2h(128 ** -0.5):#x}")
    vm.wait("Q0")
    load_K(1)
    vm.wait("Q1")
    load_K(2)
    vm.wait("Q2")
    load_K(3)
    a.I("s_waitcnt lgkmcnt(0)")
    make_tag()
    a.I("s_barrier")
    stamp("B0")
    for k in range(3):
        a.I(f"ds_read_b32 v{vT+k}, v{vPQ} offset:{L_TX + k*128}")
    a.I(f"s_cmp_lt_u32 s{sWAVE}, 2")
    a.I(f"s_cselect_b32 s{sT0}, -1, 0")
    vm.wait("K0")
    load_K(4)
    a.I("s_waitcnt lgkmcnt(0)")
    a.I(f"v_and_b32 v{vT+2}, s{sT0}, v{vT+2}")
    for k in range(3):
        bb = vBA if k % 2 == 0 else vBB
        for r in range(4):
            a.I(f"v_and_b32 v{bb+r}, v{vT+k}, v{vM+r}")
        cc = "0" if k == 0 else f"v[{accQ}:{accQ+3}]"
        a.I(f"v_mfma_f32_16x16x32_bf16 v[{accQ}:{accQ+3}], v[{rQ+4*k}:{rQ+4*k+3}], v[{bb}:{bb+3}], {cc}")
    a.I(f"v_lshlrev_b32 v{vT+3}, 4, v{vTID}")
    a.I(f"ds_write_b128 v{vT+3}, v[{accQ}:{accQ+3}] offset:{L_RQ}")
    a.I("s_waitcnt lgkmcnt(0)")
    a.I("s_barrier")
    stamp("B1")
    for n in range(5, 8):
        vm.wait(f"K{n-4}")
        load_K(n)
        if P["qflag"] == f"K{n-4}": set_flag(0)
    for n in range(0, 4):
        vm.wait(f"K{n+4}")
        if n == 3: stamp("k7")
        load_V(n)
        if P["qflag"] == f"K{n+4}": set_flag(0)
    gs = 1 if g9 else 16
    for n in range(0, 8, 2):
        a.I(f"ds_read2_b32 v[{vPGv+n}:{vPGv+n+1}], v{vPG} offset0:{n*gs} offset1:{(n+1)*gs}")
    a.I(f"ds_read_b32 v{vPGv+8}, v{vPG} offset:{32*gs}")
    for n in range(4, 8):
        vm.wait(f"V{n-4}")
        load_V(n)
    stamp("v3")
    a.I("s_waitcnt lgkmcnt(0)")
    a.I("s_barrier")
    stamp("B3")
    a.I(f"v_lshrrev_b32 v{vT}, 3, v{vI}")
    a.I(f"v_lshlrev_b32 v{vT}, 8, v{vT}")
    a.I(f"v_and_b32 v{vT+1}, 3, v{vI}")
    a.I(f"v_lshl_add_u32 v{vT+1}, v{vG}, 2, v{vT+1}")
    a.I(f"v_lshl_add_u32 v{vT}, v{vT+1}, 4, v{vT}")
    QB = vT + 4
    a.I(f"ds_read_b128 v[{QB}:{QB+3}], v{vT} offset:{L_QL}")
    vm.wait("V4")
    load_G(0)
    a.I("s_waitcnt lgkmcnt(0)")
    for h in range(2):
        for n in range(4):
            k = 4 * h + n
            a.I(f"v_mfma_f32_16x16x32_bf16 v[{vD+4*n}:{vD+4*n+3}], v[{rA+4*k}:{rA+4*k+3}], v[{QB}:{QB+3}], 0")
        for n in range(4):
            a.I(f"v_mov_b32_dpp v{vS+4*h+n}, v{vD+4*n} quad_perm:[0,0,0,0] {DPPM}")
        for c in range(1, 4):
            for n in range(4):
                a.I(f"v_add_f32_dpp v{vS+4*h+n}, v{vD+4*n+c}, v{vS+4*h+n} quad_perm:[{c},{c},{c},{c}] {DPPM}")
    stamp("dpp")
    vm.wait("V5")
    load_G(1)
    stamp("g1")
    for n in range(0, 8, 2):
        a.I(f"v_cvt_pk_bf16_f32 v{vD+n}, v{vS+n}, v{vS+n+1}")
    for n in range(0, 8, 2):
        a.I(f"v_lshlrev_b32 v{vS+n}, 16, v{vD+n}")
        a.I(f"v_and_b32 v{vS+n+1}, 0xffff0000, v{vD+n}")
    for n in range(8):
        a.I(f"v_mul_f32 v{vS+n}, s{sSCALE}, v{vS+n}")
    for n in range(0, 8, 2):
        a.I(f"v_cvt_pk_bf16_f32 v{vD+n}, v{vS+n}, v{vS+n+1}")
    for n in range(0, 8, 2):
        a.I(f"v_lshlrev_b32 v{vS+n}, 16, v{vD+n}")
        a.I(f"v_and_b32 v{vS+n+1}, 0xffff0000, v{vD+n}")
    vMX, vLS = vT + 8, vT + 9
    assert vMX % 2 == 0
    a.I(f"v_max3_f32 v{vMX}, v{vS}, v{vS+1}, v{vS+2}")
    a.I(f"v_max3_f32 v{vT}, v{vS+3}, v{vS+4}, v{vS+5}")
    a.I(f"v_max3_f32 v{vMX}, v{vMX}, v{vS+6}, v{vS+7}")
    a.I(f"v_max_f32 v{vMX}, v{vMX}, v{vT}")
    xrow_reduce(a, "v_max_f32", vMX, vT)
    stamp("max")
    vm.wait("V6")
    load_G(2)
    stamp("g2")
    a.I(f"v_mul_f32 v{vT}, s{sL2E}, v{vMX}")
    for n in range(8):
        a.I(f"v_fma_f32 v{vS+n}, v{vS+n}, s{sL2E}, -v{vT}")
    for n in range(8):
        a.I(f"v_exp_f32 v{vS+n}, v{vS+n}")
    a.I(f"v_add_f32 v{vLS}, v{vS}, v{vS+1}")
    a.I(f"v_add_f32 v{vT}, v{vS+2}, v{vS+3}")
    a.I(f"v_add_f32 v{vT+1}, v{vS+4}, v{vS+5}")
    a.I(f"v_add_f32 v{vT+2}, v{vS+6}, v{vS+7}")
    for n in range(8):
        a.I(f"v_cvt_pk_bf16_f32 v{vS+n}, v{vS+n}, v{vS+n}")
    a.I(f"v_add_f32 v{vLS}, v{vLS}, v{vT}")
    a.I(f"v_add_f32 v{vT+1}, v{vT+1}, v{vT+2}")
    a.I(f"v_add_f32 v{vLS}, v{vLS}, v{vT+1}")
    for n in range(8):
        for r in range(4):
            a.I(f"v_and_b32 v{rA+4*n+r}, v{vS+n}, v{vM+r}")
        if n < 7:
            cc = "0" if n == 0 else f"v[{accO}:{accO+3}]"
            a.I(f"v_mfma_f32_16x16x32_bf16 v[{accO}:{accO+3}], v[{rB+4*n}:{rB+4*n+3}], v[{rA+4*n}:{rA+4*n+3}], {cc}")
    xrow_reduce(a, "v_add_f32", vLS, vT)
    a.I(f"v_lshrrev_b32 v{vT}, 3, v{vI}")
    a.I(f"v_lshlrev_b32 v{vT}, 3, v{vT}")
    a.I(f"v_lshl_add_u32 v{vT}, v{vWAVE}, 4, v{vT}")
    a.I(f"ds_write_b64 v{vT}, v[{vMX}:{vLS}] offset:{L_ML}")
    stamp("pv6")
    vm.wait("V7")
    stamp("v7")
    load_G(3)
    a.I(f"v_mfma_f32_16x16x32_bf16 v[{accO}:{accO+3}], v[{rB+28}:{rB+31}], v[{rA+28}:{rA+31}], v[{accO}:{accO+3}]")
    a.I(f"v_lshlrev_b32 v{vT+3}, 4, v{vTID}")
    a.I(f"ds_write_b128 v{vT+3}, v[{accO}:{accO+3}] offset:{L_RO}")
    a.I("s_waitcnt lgkmcnt(0)")
    a.I("s_barrier")
    stamp("B5")

    def g_mfma(n):
        bb = vBA if n % 2 == 0 else vBB
        for r in range(4):
            a.I(f"v_and_b32 v{bb+r}, v{vPGv+n}, v{vM+r}")
        cc = "0" if n == 0 else f"v[{accG}:{accG+3}]"
        a.I(f"v_mfma_f32_16x16x32_bf16 v[{accG}:{accG+3}], v[{regG(n)}:{regG(n)+3}], v[{bb}:{bb+3}], {cc}")

    for n in range(4, 9):
        vm.wait(f"G{n-4}")
        load_G(n)
        g_mfma(n - 4)
    on = 0
    for n in range(0, 4):
        vm.wait(f"G{n+5}")
        for _ in range(P["opre"][n]):
            load_O(on); on += 1
        g_mfma(n + 5)
    a.I(f"v_lshlrev_b32 v{vT+3}, 4, v{vTID}")
    a.I(f"ds_write_b128 v{vT+3}, v[{accG}:{accG+3}] offset:{L_RG}")
    a.I(f"s_mul_i32 s{sKV1}, s2, 4608")
    a.I(f"s_add_u32 s{sKV1}, s{sKV1}, {WS_FP}")
    a.I("s_waitcnt lgkmcnt(0)")
    a.I("s_barrier")
    stamp("B6")
    a.I("s_barrier")
    for _ in range(P["nmid"]):
        load_O(on); on += 1
    if P["gwait"] is not None:
        vm.wait(P["gwait"])
    a.I("s_barrier")
    stamp("B6c")
    a.I("s_barrier")
    while on < 9:
        load_O(on); on += 1
    a.I(f"v_cmp_gt_u32 vcc, 288, v{vTID}")
    a.I(f"s_mov_b64 s[{sM0}:{sM0+1}], vcc")
    a.I("s_barrier")
    stamp("B7s")
    for n in range(0, 8, 2):
        a.I(f"ds_read2_b32 v[{vPGv+n}:{vPGv+n+1}], v{vPA} offset0:{(L_TA >> 2) - (L_TA >> 2) + 4*n} offset1:{4*n+4}" if False else
            f"ds_read2_b32 v[{vPGv+n}:{vPGv+n+1}], v{vPA} offset0:{4*n} offset1:{4*n+4}")
    a.I(f"ds_read_b32 v{vPGv+8}, v{vPA} offset:128")
    for n in range(9):
        if n % 2 == 0:
            a.I(f"s_waitcnt lgkmcnt({max(4 - n // 2, 0)})")
        bb = vBA if n % 2 == 0 else vBB
        for r in range(4):
            a.I(f"v_and_b32 v{bb+r}, v{vPGv+n}, v{vM+r}")
        vm.wait(f"O{n}")
        cc = "0" if n == 0 else f"v[{accF}:{accF+3}]"
        a.I(f"v_mfma_f32_16x16x32_bf16 v[{accF}:{accF+3}], v[{regO(n)}:{regO(n)+3}], v[{bb}:{bb+3}], {cc}")
    stamp("B8")
    lbl = role("lt", 5)
    a.I(f"s_mov_b64 exec, s[{sM0}:{sM0+1}]")
    tagit(accF)
    a.I(f"buffer_store_dwordx4 v[{accF}:{accF+3}], v{vT+3}, s[{sWS}:{sWS+3}], s{sKV1} offen {P['fp_st']}")
    a.I("s_mov_b64 exec, -1")
    a.label(lbl)
    stamp("fpub")
    a.fence()
    a.I("s_cmp_ge_u32 s2, 36")
    a.I("s_cbranch_scc1 FIN")
    a.I(f"v_lshrrev_b32 v{vT}, 3, v{vTID}")
    a.I(f"v_mul_u32_u24 v{vT}, 4608, v{vT}")
    a.I(f"v_and_b32 v{vT+1}, 7, v{vTID}")
    a.I(f"v_lshl_add_u32 v{vT}, v{vT+1}, 4, v{vT}")
    a.I(f"s_lshl_b32 s{sT0}, s2, 7")
    a.I(f"s_add_u32 s{sT0}, s{sT0}, {WS_FP}")
    for k in range(1, 4):
        a.I(f"s_add_u32 s{sQO+k-1}, s{sT0}, {k*64*4608}")
    a.I(f"s_lshr_b32 s{sT1}, s2, 3")
    a.I(f"s_lshl_b32 s{sT1}, s{sT1}, 7")
    a.I(f"s_bfe_u32 s{sT2}, s2, 0x20001")
    a.I(f"s_lshl_b32 s{sT2}, s{sT2}, 5")
    a.I(f"s_add_u32 s{sT1}, s{sT1}, s{sT2}")
    a.I(f"s_and_b32 s{sT2}, s2, 1")
    a.I(f"s_mul_i32 s{sT2}, s{sT2}, 576")
    a.I(f"s_add_u32 s{sT1}, s{sT1}, s{sT2}")
    a.I(f"s_lshl_b32 s{sGO}, s{sT1}, 1")
    a.I(f"v_lshlrev_b32 v{vT+2}, 1, v{vTID}")
    a.I(f"v_mov_b32 v{vT+3}, {OOB}")
    a.I(f"v_cmp_gt_u32 vcc, 32, v{vTID}")
    a.I(f"v_cndmask_b32 v{vT+2}, v{vT+3}, v{vT+2}, vcc")
    a.I(f"buffer_load_ushort v{vT+7}, v{vT+2}, s[{sX}:{sX+3}], s{sGO} offen")
    so = [sT0, sQO, sQO + 1, sQO + 2]
    F = rA
    a.I(f"v_lshlrev_b32 v{vT+4}, 7, v{vWAVE}")
    a.I(f"v_lshl_add_u32 v{vT+4}, v{vT+1}, 4, v{vT+4}")
    a.I(f"v_bfe_u32 v{vT+5}, v{vLANE}, 3, 2")
    a.I(f"v_lshlrev_b32 v{vT+5}, 2, v{vT+5}")
    a.I(f"v_lshl_add_u32 v{vT+5}, v{vT+1}, 4, v{vT+5}")
    a.I(f"v_cmp_gt_u32 s[{sK}:{sK+1}], 8, v{vLANE}")
    for k in range(4):
        a.I(f"s_mov_b64 s[{sM0+2*k}:{sM0+2*k+1}], -1")
    a.I(f"s_mov_b32 s{sRETRY}, 0")
    def fg_issue():
        for k in range(4):
            a.I(f"s_or_b64 exec, s[{sM0+2*k}:{sM0+2*k+1}], 1")
            a.I(f"buffer_load_dwordx4 v[{F+4*k}:{F+4*k+3}], v{vT}, s[{sWS}:{sWS+3}], s{so[k]} offen {P['fp_ld']}")
    lr, ld = L("FG_TRY"), L("FG_OK")
    if P["fgpipe"]:
        fg_issue()
    a.fence()
    a.label(lr)
    fg_issue()
    a.I(f"s_waitcnt vmcnt({4 if P['fgpipe'] else 0})")
    for k in range(4):
        a.I(f"s_or_b64 exec, s[{sM0+2*k}:{sM0+2*k+1}], 1")
        check(F + 4 * k, vT + 8, vT + 9, sM0 + 2 * k)
    a.I("s_mov_b64 exec, -1")
    a.I(f"s_or_b64 vcc, s[{sM0}:{sM0+1}], s[{sM0+2}:{sM0+3}]")
    a.I(f"s_or_b64 s[{sV}:{sV+1}], s[{sM0+4}:{sM0+5}], s[{sM0+6}:{sM0+7}]")
    a.I(f"s_or_b64 vcc, vcc, s[{sV}:{sV+1}]")
    a.I("s_cmp_eq_u64 vcc, 0")
    a.I(f"s_cbranch_scc1 {ld}")
    if P["fgsleep"]:
        a.I(f"s_sleep {P['fgsleep']}")
    a.I(f"s_add_u32 s{sRETRY}, s{sRETRY}, 1")
    a.I(f"s_cmp_le_u32 s{sRETRY}, {SPIN_LIMIT}")
    a.I(f"s_cbranch_scc1 {lr}")
    a.label(ld)
    stamp("fg")
    F0 = F
    F = rB
    for c in range(16):
        a.I(f"v_and_b32 v{F+c}, s{sHI}, v{F0+c}")
    for r in range(4):
        a.I(f"v_add_f32 v{F+r}, v{F+r}, v{F+4+r}")
        a.I(f"v_add_f32 v{F+8+r}, v{F+8+r}, v{F+12+r}")
    for r in range(4):
        a.I(f"v_add_f32 v{F+r}, v{F+r}, v{F+8+r}")
    for r in range(4):
        a.I(f"v_add_f32_dpp v{F+r}, v{F+r}, v{F+r} row_ror:8 {DPPM}")
    for r in range(4):
        a.I(f"v_mov_b32 v{F+4+r}, v{F+r}")
    for r in range(4):
        a.I(f"v_permlane16_swap_b32 v{F+r}, v{F+4+r}")
    for r in range(4):
        a.I(f"v_add_f32 v{F+r}, v{F+r}, v{F+4+r}")
    for r in range(4):
        a.I(f"v_mov_b32 v{F+4+r}, v{F+r}")
    for r in range(4):
        a.I(f"v_permlane32_swap_b32 v{F+r}, v{F+4+r}")
    for r in range(4):
        a.I(f"v_add_f32 v{F+r}, v{F+r}, v{F+4+r}")
    a.I(f"s_mov_b64 exec, s[{sK}:{sK+1}]")
    a.I(f"ds_write_b128 v{vT+4}, v[{F}:{F+3}] offset:{L_RZ}")
    a.I("s_mov_b64 exec, -1")
    a.I(f"v_lshlrev_b32 v{vT+7}, 16, v{vT+7}")
    a.I("s_waitcnt lgkmcnt(0)")
    a.I("s_barrier")
    lbl = role("eq", 0)
    for w in range(8):
        a.I(f"ds_read_b32 v{F+w}, v{vT+5} offset:{L_RZ + w*128}")
    a.I("s_waitcnt lgkmcnt(4)")
    a.I(f"v_add_f32 v{F}, v{F}, v{F+1}")
    a.I(f"v_add_f32 v{F+2}, v{F+2}, v{F+3}")
    a.I(f"v_add_f32 v{F}, v{F}, v{vT+7}")
    a.I("s_waitcnt lgkmcnt(0)")
    a.I(f"v_add_f32 v{F+4}, v{F+4}, v{F+5}")
    a.I(f"v_add_f32 v{F+6}, v{F+6}, v{F+7}")
    a.I(f"v_add_f32 v{F}, v{F}, v{F+2}")
    a.I(f"v_add_f32 v{F+4}, v{F+4}, v{F+6}")
    a.I(f"v_add_f32 v{F}, v{F}, v{F+4}")
    a.I(f"v_cvt_pk_bf16_f32 v{F}, v{F}, v{F}")
    a.I(f"buffer_store_short v{F}, v{vT+2}, s[{sOUT}:{sOUT+3}], s{sGO} offen")
    a.I("s_cmp_eq_u32 s2, 0")
    sk = L("NOEP")
    a.I(f"s_cbranch_scc0 {sk}")
    a.I(f"s_add_u32 s{sE}, s{sE}, 1")
    a.I(f"v_mov_b32 v{vT+6}, s{sE}")
    a.I(f"v_mov_b32 v{vT+8}, {WS_EPOCH}")
    a.I(f"v_cmp_eq_u32 vcc, 0, v{vLANE}")
    a.I(f"s_and_saveexec_b64 s[{sM0}:{sM0+1}], vcc")
    a.I(f"buffer_store_dword v{vT+6}, v{vT+8}, s[{sWS}:{sWS+3}], 0 offen sc1")
    a.I(f"s_mov_b64 exec, s[{sM0}:{sM0+1}]")
    if P.get("selftime"):
        a.I("s_memrealtime s[96:97]")
        a.I("s_waitcnt lgkmcnt(0)")
        a.I("s_sub_u32 s100, s96, s98")
        a.I(f"s_mul_i32 s100, s100, {P['selftime']}")
        lw = L("SELF")
        a.label(lw)
        a.I("s_memrealtime s[88:89]")
        a.I("s_waitcnt lgkmcnt(0)")
        a.I("s_sub_u32 s90, s88, s96")
        a.I("s_cmp_lt_u32 s90, s100")
        a.I(f"s_cbranch_scc1 {lw}")
    a.label(sk)
    a.label(lbl)
    a.label("FIN_S")
    if diag:
        a.I(f"s_add_u32 s{sWAVE}, s{sWAVE}, 4")
    a.I("s_branch FIN2") if diag else None
    a.label("FIN")
    if diag:
        a.I(f"v_lshrrev_b32 v{vT}, 6, v{vTID}") if False else None
    a.label("FIN2")
    if P.get("startdbg"):
        a.I("s_waitcnt lgkmcnt(0)")
        a.I(f"s_load_dwordx2 s[{sDBG}:{sDBG+1}], s[0:1], {OFF['dbg']}")
        a.I(f"s_mov_b32 s{sDBG+2}, 64")
        a.I(f"s_mov_b32 s{sDBG+3}, 0x20000")
        a.I("s_waitcnt lgkmcnt(0)")
        a.I(f"s_lshl_b32 s{sT0}, s2, 2")
        a.I(f"v_mov_b32 v{vT}, s98")
        a.I(f"v_mov_b32 v{vT+1}, 0")
        a.I(f"v_cmp_eq_u32 vcc, 0, v{vLANE}")
        a.I(f"s_and_saveexec_b64 s[{sM0}:{sM0+1}], vcc")
        a.I(f"buffer_store_dword v{vT}, v{vT+1}, s[{sDBG}:{sDBG+3}], s{sT0} offen")
    if diag:
        stamp("end")
        a.I("s_waitcnt lgkmcnt(0)")
        a.fence()
        a.I(f"s_cmp_eq_u32 s19, {stampwave}")
        a.I("s_cbranch_scc0 END")
        for k in range(len(stamps)):
            a.I(f"v_writelane_b32 v{NVGPR-1}, s{STAMP_REGS[k]}, {k}")
        a.I(f"v_writelane_b32 v{NVGPR-1}, s98, 15")
        a.I(f"s_lshl_b32 s{sT0}, s2, 6")
        a.I(f"v_lshlrev_b32 v{vT}, 2, v{vLANE}")
        a.I(f"v_cmp_gt_u32 vcc, 16, v{vLANE}")
        a.I(f"s_and_saveexec_b64 s[{sM0}:{sM0+1}], vcc")
        a.I(f"buffer_store_dword v{NVGPR-1}, v{vT}, s[{sDBG}:{sDBG+3}], s{sT0} offen")
    a.label("END")
    a.I("s_endpgm")
    a.raw('.section .rodata,"a"')
    a.raw(kernel_desc(kn, NVGPR, 102))
    txt = a.text()
    if diag:
        txt = txt.replace(f"s_cmp_eq_u32 s19, {stampwave}", f"s_cmp_eq_u32 s3, {stampwave}")
        txt = txt.replace(f"    v_readfirstlane_b32 s{sWAVE}, v{vWAVE}\n", f"    v_readfirstlane_b32 s{sWAVE}, v{vWAVE}\n    v_readfirstlane_b32 s3, v{vWAVE}\n", 1)
    open(path, "w").write(txt)
    print("wrote", path, "insts", a.ninst, "nops", a.nops, "stamps", stamps)


if __name__ == "__main__":
    E = ["end"]
    D = dict(opre=(1, 1, 1, 1), nmid=2, gwait="O1")
    def B(n, **kw):
        gen(f"bc_{n}.s", diag=True, stampwave=4, stamp_sel=E, P=dict(D, **kw))
    gen("v9.s", P=D)
    B("a")
    B("b", rot="pair")
    B("c", rot="kvh")
    B("d", rot="half")
    B("e", gmap="contig")
    B("f", gmap="contig", rot="pair")
```

```python
import sys, math, struct
sys.path.insert(0, "gen")
from common import *

def f2h(x):
    return struct.unpack("<I", struct.pack("<f", x))[0]

WS_EPOCH = 0
WS_QP = 0x1000
WS_OP = 0x50000
WS_HP = 0xA0000
WS_FP = 0x140000
WS_SLOW = 0x400000
NFAST = 8
L_TX, L_TA, L_QL, L_ML, L_RZ = 0, 4608, 5120, 5632, 6144
L_FLAG = 5760
L_RQ, L_RO, L_RG, L_RF, L_RX = 8192, 24576, 32768, 40960, 81920
LDS_BYTES = 40960
OOB = 0x40000000
SPIN_LIMIT = 1 << 15

sX, sK, sV, sWQ, sWO, sWG, sWU, sWD, sOUT, sWS, sDBG, sGS, sOS = 4, 8, 12, 16, 20, 24, 28, 32, 36, 40, 44, 48, 52
sWAVE, sXC, sSG, sKVH, sJ, sB, sSPL, sCS, sFR, sKV0, sKV1 = 56, 57, 58, 59, 60, 61, 62, 63, 64, 65, 66
sT0, sT1, sT2 = 67, 68, 69
sTAG, sTB = 70, 71
sSEL01, sSEL23, sSCALE, sL2E, sE, sRETRY = 75, 76, 77, 78, 79, 80
sQO = 81
sGO, sOO, sOX, sHI = 84, 85, 86, 87
sM0 = 88

vTID, vLANE, vWAVE, vI, vG = 0, 1, 2, 3, 4
vKO, vVO, vQOFF, vGOFF, vOOFF, vO4, vOX = 5, 6, 7, 8, 9, 10, 11
vM = 12
vFF, vPQ, vPG, vPA = 16, 17, 18, 19
vBA, vBB = 20, 24
accO, accG, accF, accX = 28, 32, 36, 56
accQ = accX
vD = 36
vS = 60
vPGv = 68
vT = 78
rA, rB, rC = 88, 120, 152
NVGPR = 168


class VM:
    def __init__(self, a):
        self.a = a
        self.seq = []

    def issue(self, name, text, optional=False):
        self.a.I(text)
        if not optional:
            self.seq.append(name)

    def wait(self, name):
        n = len(self.seq) - 1 - self.seq.index(name)
        self.a.I(f"s_waitcnt vmcnt({n})")


def gen(path, diag=False, stamp_sel=None, stampwave=4, P=None):
    P = dict(dict(qflag="K5", prio=2, nib=3, tlb=False, tlb_wave=3, opre=(1, 1, 1, 1), nmid=2, gwait="O1", og_at="B6", nfast=16, codepf=None, fgpipe=True, fgsleep=0, fp_st="sc1", fp_ld="sc1", hgpipe=True, rot=None, gmap="stride9", qmap="block", kvmap="fine", fgadapt=None, layout="streamfirst", xearly=False, k4late=True, g0early=True, ep_st=""), **(P or {}))
    a = Asm()
    a.raw(HEADER_COMMENTS.rstrip())
    a.raw(f"; @launch grid=(256,1,1) block=(768,1,1) lds={LDS_BYTES}")
    a.raw('.amdgcn_target "amdgcn-amd-amdhsa--gfx950"')
    a.raw(".text")
    kn = NAME + "_kernel"
    kernel_header(a, kn)
    stamps = []
    lab = [0]
    STAMP_REGS = [96, 100, 24, 26, 28, 30, 52, 54, 2000]

    def L(prefix):
        lab[0] += 1
        return f"{prefix}_{lab[0]}"

    def stamp(name):
        if diag and (stamp_sel is None or name in stamp_sel or name == "end"):
            if name in stamps:
                r = STAMP_REGS[stamps.index(name)]
            else:
                r = STAMP_REGS[len(stamps)]
                assert r < 200, "too many stamps"
                stamps.append(name)
            a.I(f"s_memrealtime s[{r}:{r+1}]")

    def role(op, n):
        lbl = L("SKIP")
        a.fence()
        a.I(f"s_cmp_{op}_u32 s{sWAVE}, {n}")
        a.I(f"s_cbranch_scc0 {lbl}")
        return lbl

    def tagit(r0):
        for c in range(4):
            a.I(f"v_bfi_b32 v{r0+c}, v{vFF}, s{sTB+c}, v{r0+c}")

    def untag(r0, n=4):
        for c in range(n):
            a.I(f"v_and_b32 v{r0+c}, s{sHI}, v{r0+c}")

    def check(r0, t0, t1, sdst):
        a.I(f"v_perm_b32 v{t0}, v{r0+1}, v{r0}, s{sSEL01}")
        a.I(f"v_perm_b32 v{t1}, v{r0+3}, v{r0+2}, s{sSEL23}")
        a.I(f"v_or_b32 v{t0}, v{t0}, v{t1}")
        a.I(f"v_cmp_ne_u32 s[{sdst}:{sdst+1}], s{sTAG}, v{t0}")

    def make_tag():
        a.I(f"s_mul_i32 s{sTAG}, s{sE}, 0x9E3779B1")
        a.I(f"s_add_u32 s{sTAG}, s{sTAG}, 0x7F4A7C15")
        for c in range(4):
            a.I(f"s_bfe_u32 s{sTB+c}, s{sTAG}, {(8 << 16) | (8*c):#x}")

    def wait_flag(off):
        lr = L("FLAGW")
        a.I(f"v_mov_b32 v{vT+8}, {L_FLAG + off}")
        a.I(f"s_mov_b32 s{sRETRY}, 0")
        a.fence()
        a.label(lr)
        a.I(f"ds_read_b32 v{vT+9}, v{vT+8}")
        a.I(f"s_add_u32 s{sRETRY}, s{sRETRY}, 1")
        a.I("s_waitcnt lgkmcnt(0)")
        a.I(f"v_readfirstlane_b32 s{sT2}, v{vT+9}")
        a.I(f"s_cmp_gt_u32 s{sRETRY}, {SPIN_LIMIT * 8}")
        a.I(f"s_cselect_b32 s{sT2}, 1, s{sT2}")
        a.I(f"s_cmp_eq_u32 s{sT2}, 0")
        a.I(f"s_cbranch_scc1 {lr}")

    def set_flag(off):
        lbl = role("eq", 0)
        a.I(f"v_mov_b32 v{vT+8}, {L_FLAG + off}")
        a.I(f"v_mov_b32 v{vT+9}, 1")
        a.I(f"ds_write_b32 v{vT+8}, v{vT+9}")
        a.label(lbl)

    sEFF = 83

    def gather_issue(mk, bases):
        for t in mk(bases):
            a.I(t)

    def gather_loop(name, mk, bases, checks, sleep, preissued=False, pipe=False):
        a.I(f"s_mov_b32 s{sRETRY}, 0")
        ld, lc = L(name + "_OK"), L(name + "_CHK")
        n = len(checks)
        if not preissued:
            for t in mk(bases):
                a.I(t)
        def reissue():
            a.I(f"s_add_u32 s{sRETRY}, s{sRETRY}, 1")
            a.I(f"s_and_b32 s{sT2}, s{sRETRY}, 1")
            a.I(f"s_cmp_ge_u32 s{sRETRY}, {P['nfast']}")
            a.I(f"s_cselect_b32 s{sT2}, s{sT2}, 0")
            a.I(f"s_mul_i32 s{sT2}, s{sT2}, {WS_SLOW}")
            effs = []
            for k, bs in enumerate(bases):
                a.I(f"s_add_u32 s{sEFF+k}, s{bs}, s{sT2}")
                effs.append(sEFF + k)
            for t in mk(effs):
                a.I(t)
        def checks_all(extra):
            first = True
            for k, r in enumerate(checks):
                a.I(f"s_waitcnt vmcnt({n - 1 - k + extra})")
                dst = sM0 if first else sM0 + 2
                check(r, vT + 8, vT + 9, dst)
                if not first:
                    a.I(f"s_or_b64 s[{sM0}:{sM0+1}], s[{sM0}:{sM0+1}], s[{sM0+2}:{sM0+3}]")
                first = False
            a.I(f"s_cmp_eq_u64 s[{sM0}:{sM0+1}], 0")
            a.I(f"s_cbranch_scc1 {ld}")
        if pipe:
            lp = L(name + "_PIPE")
            a.fence()
            a.label(lp)
            a.I(f"s_add_u32 s{sRETRY}, s{sRETRY}, 1")
            for t in mk(bases):
                a.I(t)
            checks_all(n)
            a.I(f"s_cmp_lt_u32 s{sRETRY}, {P['nfast'] - 1}")
            a.I(f"s_cbranch_scc1 {lp}")
        a.fence()
        a.label(lc)
        checks_all(0)
        if sleep:
            a.I(f"s_sleep {sleep}")
        a.I(f"s_cmp_gt_u32 s{sRETRY}, {SPIN_LIMIT}")
        a.I(f"s_cbranch_scc1 {ld}")
        reissue()
        a.I(f"s_branch {lc}")
        a.label(ld)
        if diag:
            slot = {"QG": 12, "OG": 13, "HG": 14}[name]
            a.I(f"v_writelane_b32 v{NVGPR-1}, s{sRETRY}, {slot}")

    def publish(r0, voff, soff, suffix=""):
        a.I(f"buffer_store_dwordx4 v[{r0}:{r0+3}], v{voff}, s[{sWS}:{sWS+3}], s{soff} offen {suffix}")
        a.I(f"s_add_u32 s{sT2}, s{soff}, {WS_SLOW}")
        a.I(f"buffer_store_dwordx4 v[{r0}:{r0+3}], v{voff}, s[{sWS}:{sWS+3}], s{sT2} offen {suffix} sc1")

    a.I("s_cmp_ge_u32 s2, 256")
    a.I("s_cbranch_scc1 END")
    ptrs = (("x", sX), ("wq", sWQ), ("k", sK), ("ws", sWS), ("v", sV), ("wg", sWG), ("wu", sWU), ("wo", sWO),
            ("wd", sWD), ("out", sOUT))
    for nm, r in ptrs:
        a.I(f"s_load_dwordx2 s[{r}:{r+1}], s[0:1], {OFF[nm]}")
    if diag:
        a.I(f"s_load_dwordx2 s[{sDBG}:{sDBG+1}], s[0:1], {OFF['dbg']}")
    if diag or P.get("selftime") or P.get("startdbg"):
        a.I("s_memrealtime s[98:99]")
    a.I(f"v_lshrrev_b32 v{vWAVE}, 6, v{vTID}")
    a.I(f"v_and_b32 v{vLANE}, 63, v{vTID}")
    a.I(f"v_readfirstlane_b32 s{sWAVE}, v{vWAVE}")
    for nm, r in ptrs:
        a.I(f"s_mov_b32 s{r+2}, {SIZE[nm]}")
        a.I(f"s_mov_b32 s{r+3}, 0x20000")
    if diag:
        a.I(f"s_mov_b32 s{sDBG+2}, {P.get('dbgsize', 65536)}")
        a.I(f"s_mov_b32 s{sDBG+3}, 0x20000")
    a.I(f"v_and_b32 v{vI}, 15, v{vLANE}")
    a.I(f"v_lshrrev_b32 v{vG}, 4, v{vLANE}")
    a.I(f"v_lshlrev_b32 v{vVO}, 4, v{vLANE}")
    a.I(f"s_and_b32 s{sXC}, s2, 7")
    a.I(f"s_lshr_b32 s{sSG}, s2, 3")
    a.I(f"s_lshr_b32 s{sT0}, s{sSG}, 4")
    a.I(f"s_lshl_b32 s{sKVH}, s{sXC}, 1")
    a.I(f"s_add_u32 s{sKVH}, s{sKVH}, s{sT0}")
    a.I(f"s_and_b32 s{sJ}, s{sSG}, 15")
    a.I(f"s_lshr_b32 s{sB}, s{sJ}, 3")
    a.I(f"s_and_b32 s{sSPL}, s{sJ}, 7")
    a.I(f"s_lshr_b32 s{sT0}, s{sSG}, 2")
    a.I(f"s_lshl_b32 s{sCS}, s{sXC}, 3")
    a.I(f"s_add_u32 s{sCS}, s{sCS}, s{sT0}")
    a.I(f"s_and_b32 s{sFR}, s{sSG}, 3")
    a.I(f"v_mov_b32 v{vFF}, 0xff")
    a.I(f"s_mov_b32 s{sHI}, 0xffffff00")
    a.I(f"s_mov_b32 s{sSEL01}, 0x0c0c0400")
    a.I(f"s_mov_b32 s{sSEL23}, 0x04000c0c")
    a.I(f"s_mov_b32 s{sL2E}, {f2h(math.log2(math.e)):#x}")
    if P["layout"] == "streamfirst":
        if P["xearly"]:
            lx = L("NOX")
            a.I(f"s_cmp_ge_u32 s{sWAVE}, 2")
            a.I(f"s_cbranch_scc1 {lx}")
            a.I(f"v_lshlrev_b32 v{vT}, 1, v{vLANE}")
            a.I(f"s_mul_i32 s{sT1}, s{sWAVE}, 1152")
            a.I("s_waitcnt lgkmcnt(0)")
            for i in range(9):
                a.I(f"buffer_load_ushort v{rA+i}, v{vT}, s[{sX}:{sX+3}], s{sT1} offen offset:{i*128}")
            a.label(lx)
        a.I(f"s_cmp_lt_u32 s{sWAVE}, 4")
        a.I("s_cbranch_scc1 SERVICE")
        a.raw("; @@SERVICE_BEGIN")
        a.label("SERVICE")
    else:
        a.I(f"s_cmp_ge_u32 s{sWAVE}, 4")
        a.I("s_cbranch_scc1 STREAM")

    if P["prio"]:
        a.I(f"s_setprio {P['prio']}")
    a.I(f"v_mov_b32 v{rC}, 0")
    a.I(f"v_lshlrev_b32 v{vT}, 1, v{vLANE}")
    a.I(f"s_mul_i32 s{sT1}, s{sWAVE}, 1152")
    a.I("s_waitcnt lgkmcnt(0)")
    a.I(f"s_load_dword s{sE}, s[{sWS}:{sWS+1}], {WS_EPOCH}")
    if P["codepf"]:
        lbl = role("eq", 3)
        if P["codepf"] == "some":
            a.I(f"s_cmp_lt_u32 s{sSG}, 4")
            a.I(f"s_cbranch_scc0 {lbl}")
        a.I(f"s_getpc_b64 s[{sM0}:{sM0+1}]")
        a.label("PFBASE")
        a.I(f"v_lshlrev_b32 v{rA}, 7, v{vLANE}")
        a.I(f"v_add_u32 v{rA+1}, 8192, v{rA}")
        a.I(f"global_load_dword v{rA+2}, v{rA}, s[{sM0}:{sM0+1}]")
        a.raw(f"    v_cmp_gt_u32 vcc, (END-PFBASE), v{rA+1}")
        a.I(f"s_and_saveexec_b64 s[{sM0+2}:{sM0+3}], vcc")
        a.I(f"global_load_dword v{rA+3}, v{rA+1}, s[{sM0}:{sM0+1}]")
        a.I(f"s_mov_b64 exec, s[{sM0+2}:{sM0+3}]")
        a.label(lbl)
    if P["tlb"]:
        lbl = role("eq", P["tlb_wave"])
        J = [81, 82, 83, 84, 85, 86, 65, 66, 48, 49, 50, 51, 52, 53]
        jn = [0]
        def touch(base, off_s=None, imm=0):
            d = J[jn[0]]; jn[0] += 1
            if off_s is None:
                a.I(f"s_load_dword s{d}, s[{base}:{base+1}], {imm}")
            else:
                a.I(f"s_load_dword s{d}, s[{base}:{base+1}], s{off_s}")
        a.I(f"s_lshl_b32 s{sT0}, s{sB}, 4")
        a.I(f"s_add_u32 s{sT0}, s{sT0}, s{sKVH}")
        a.I(f"s_lshl_b32 s{sT0}, s{sT0}, 21")
        a.I(f"s_add_u32 s{sT0}, s{sT0}, {6144*256}")
        touch(sK, sT0)
        touch(sV, sT0)
        a.I(f"s_mul_i32 s{sT0}, s{sFR}, {144*9216}")
        touch(sWG, sT0)
        touch(sWU, sT0)
        a.I(f"s_add_u32 s{sT0}, s{sT0}, {143*9216}")
        touch(sWG, sT0)
        touch(sWU, sT0)
        a.I(f"s_mul_i32 s{sT0}, s{sKVH}, {256*1152}")
        touch(sWO, sT0)
        a.I(f"s_add_u32 s{sT0}, s{sT0}, {255*1152}")
        touch(sWO, sT0)
        a.I(f"s_mul_i32 s{sT0}, s{sCS}, {72*1152}")
        touch(sWD, sT0)
        a.I(f"s_add_u32 s{sT0}, s{sT0}, {71*1152}")
        touch(sWD, sT0)
        a.I(f"s_mov_b32 s{sT0}, 0x200000")
        touch(sWS, sT0)
        touch(sOUT, None, 0)
        a.label(lbl)
    xr = rA
    if not (P["layout"] == "streamfirst" and P["xearly"]):
        lbl = role("lt", 2)
        for i in range(9):
            a.I(f"buffer_load_ushort v{xr+i}, v{vT}, s[{sX}:{sX+3}], s{sT1} offen offset:{i*128}")
        a.label(lbl)
    for _ in range(P["nib"]):
        a.I("s_barrier")
    lbl = role("lt", 2)
    a.I("s_waitcnt vmcnt(0)")
    stamp("xland")
    for i in range(9):
        a.I(f"v_lshlrev_b32 v{xr+i}, 16, v{xr+i}")
    a.I(f"v_add_f32 v{vT+1}, v{xr}, v{xr+1}")
    a.I(f"v_add_f32 v{vT+3}, v{xr+2}, v{xr+3}")
    a.I(f"v_add_f32 v{vT+4}, v{xr+4}, v{xr+5}")
    a.I(f"v_add_f32 v{vT+5}, v{xr+6}, v{xr+7}")
    a.I(f"v_add_f32 v{vT+1}, v{vT+1}, v{vT+3}")
    a.I(f"v_add_f32 v{vT+4}, v{vT+4}, v{vT+5}")
    a.I(f"v_add_f32 v{vT+1}, v{vT+1}, v{xr+8}")
    a.I(f"v_add_f32 v{vT+1}, v{vT+1}, v{vT+4}")
    allreduce64(a, "v_add_f32", vT + 1, vT + 2)
    a.I(f"v_mul_f32 v{vT+1}, {f2h(1/576):#x}, v{vT+1}")
    dv = rA + 16
    for i in range(9):
        a.I(f"v_sub_f32 v{dv+i}, v{xr+i}, v{vT+1}")
    a.I(f"v_mul_f32 v{vT+4}, v{dv}, v{dv}")
    a.I(f"v_mul_f32 v{vT+5}, v{dv+1}, v{dv+1}")
    for i in range(2, 9):
        a.I(f"v_fmac_f32 v{vT+4+(i%2)}, v{dv+i}, v{dv+i}")
    a.I(f"v_add_f32 v{vT+4}, v{vT+4}, v{vT+5}")
    round_bf16(a, vT + 1, vT + 1)
    for i in range(9):
        a.I(f"v_sub_f32 v{xr+i}, v{xr+i}, v{vT+1}")
    allreduce64(a, "v_add_f32", vT + 4, vT + 2)
    a.I(f"v_mul_f32 v{vT+4}, {f2h(1/576):#x}, v{vT+4}")
    round_bf16(a, vT + 4, vT + 4)
    a.I(f"v_add_f32 v{vT+4}, {f2h(1e-5):#x}, v{vT+4}")
    round_bf16(a, vT + 4, vT + 4)
    a.I(f"v_sqrt_f32 v{vT+4}, v{vT+4}")
    for i in range(9):
        a.I(f"v_cvt_pk_bf16_f32 v{xr+i}, v{xr+i}, v{xr+i}")
    round_bf16(a, vT + 4, vT + 4)
    a.I(f"v_rcp_f32 v{vT+5}, v{vT+4}")
    for i in range(9):
        a.I(f"v_and_b32 v{xr+i}, 0xffff0000, v{xr+i}")
    a.I(f"s_mul_i32 s{sT0}, s{sWAVE}, 2304")
    a.I(f"v_lshlrev_b32 v{vT+6}, 2, v{vLANE}")
    a.I(f"v_add_u32 v{vT+6}, s{sT0}, v{vT+6}")
    for i in range(9):
        a.I(f"v_mul_f32 v{xr+i}, v{xr+i}, v{vT+5}")
    for i in range(9):
        a.I(f"v_cvt_pk_bf16_f32 v{xr+i}, v{xr+i}, v{xr+i}")
        a.I(f"ds_write_b32 v{vT+6}, v{xr+i} offset:{L_TX + i*256}")
    a.I("s_waitcnt lgkmcnt(0)")
    a.label(lbl)
    lbl = role("eq", 2)
    a.I(f"v_lshlrev_b32 v{vT+8}, 2, v{vLANE}")
    a.I(f"v_mov_b32 v{vT+9}, 0")
    a.I(f"v_cmp_gt_u32 vcc, 8, v{vLANE}")
    a.I(f"s_and_saveexec_b64 s[{sM0}:{sM0+1}], vcc")
    a.I(f"ds_write_b32 v{vT+8}, v{vT+9} offset:{L_FLAG}")
    a.I(f"s_mov_b64 exec, s[{sM0}:{sM0+1}]")
    a.I("s_waitcnt lgkmcnt(0)")
    a.label(lbl)
    a.I("s_barrier")
    stamp("B0")
    a.I(f"v_lshrrev_b32 v{vT}, 5, v{vLANE}")
    a.I(f"v_lshlrev_b32 v{vT}, 13, v{vT}")
    a.I(f"v_bfe_u32 v{vT+1}, v{vLANE}, 3, 2")
    a.I(f"v_lshl_add_u32 v{vT}, v{vT+1}, 8, v{vT}")
    a.I(f"v_and_b32 v{vT+2}, 7, v{vLANE}")
    a.I(f"v_lshl_add_u32 v{vT}, v{vT+2}, 4, v{vT}")
    a.I(f"v_lshrrev_b32 v{vT+3}, 5, v{vLANE}")
    a.I(f"v_lshlrev_b32 v{vT+3}, 8, v{vT+3}")
    a.I(f"v_lshl_add_u32 v{vT+3}, v{vT+1}, 6, v{vT+3}")
    a.I(f"v_lshl_add_u32 v{vT+3}, v{vT+2}, 1, v{vT+3}")
    a.I("s_barrier")
    a.I("s_waitcnt vmcnt(0) lgkmcnt(0)")
    make_tag()
    lbl = role("eq", 0)
    for w in range(8):
        a.I(f"ds_read_b128 v[{rA+4*w}:{rA+4*w+3}], v{vVO} offset:{L_RQ + w*1024}")
    a.I(f"s_lshl_b32 s{sT0}, s{sKVH}, 4")
    a.I(f"s_add_u32 s{sT0}, s{sT0}, s{sJ}")
    a.I(f"s_lshl_b32 s{sT0}, s{sT0}, 10")
    a.I(f"s_add_u32 s{sT0}, s{sT0}, {WS_QP}")
    for w in range(1, 8):
        a.I(f"s_waitcnt lgkmcnt({7-w})")
        for r in range(4):
            a.I(f"v_add_f32 v{rA+r}, v{rA+r}, v{rA+4*w+r}")
    tagit(rA)
    publish(rA, vVO, sT0)
    stamp("qpub")
    a.label(lbl)
    lbl = role("eq", 2)
    a.I(f"s_lshl_b32 s{sT0}, s{sKVH}, 14")
    a.I(f"s_lshl_b32 s{sT1}, s{sB}, 7")
    a.I(f"s_add_u32 s{sT0}, s{sT0}, s{sT1}")
    a.I(f"s_add_u32 s{sT0}, s{sT0}, {WS_QP}")
    a.I(f"s_add_u32 s{sT1}, s{sT0}, 4096")
    if P["qflag"]:
        wait_flag(0)
    stamp("qflag")
    mkq = lambda so: [f"buffer_load_dwordx4 v[{rA+4*w}:{rA+4*w+3}], v{vT}, s[{sWS}:{sWS+3}], s{so[0] if w < 4 else so[1]} offen offset:{(w%4)*1024} sc1"
                      for w in range(8)]
    gather_loop("QG", mkq, [sT0, sT1], [rA + 4 * w for w in range(8)], P.get("qg_retry_sleep", 4))
    stamp("gq")
    untag(rA, 32)
    for w in range(1, 8):
        for r in range(4):
            a.I(f"v_add_f32 v{rA+r}, v{rA+r}, v{rA+4*w+r}")
    a.I(f"v_cvt_pk_bf16_f32 v{rA}, v{rA}, v{rA+1}")
    a.I(f"v_cvt_pk_bf16_f32 v{rA+2}, v{rA+2}, v{rA+3}")
    a.I(f"ds_write_b16 v{vT+3}, v{rA} offset:{L_QL}")
    a.I(f"ds_write_b16_d16_hi v{vT+3}, v{rA} offset:{L_QL+16}")
    a.I(f"ds_write_b16 v{vT+3}, v{rA+2} offset:{L_QL+32}")
    a.I(f"ds_write_b16_d16_hi v{vT+3}, v{rA+2} offset:{L_QL+48}")
    a.I("s_waitcnt lgkmcnt(0)")
    a.label(lbl)
    a.I("s_barrier")
    stamp("B3")
    a.I("s_barrier")
    lbl = role("eq", 1)
    for w in range(8):
        a.I(f"ds_read_b128 v[{rA+4*w}:{rA+4*w+3}], v{vVO} offset:{L_RO + w*1024}")
    a.I(f"v_lshrrev_b32 v{vT}, 3, v{vI}")
    a.I(f"v_lshlrev_b32 v{vT}, 3, v{vT}")
    ml = rB
    for w in range(8):
        a.I(f"ds_read_b64 v[{ml+2*w}:{ml+2*w+1}], v{vT} offset:{L_ML + w*16}")
    a.I(f"s_lshl_b32 s{sT0}, s{sB}, 4")
    a.I(f"s_add_u32 s{sT0}, s{sT0}, s{sKVH}")
    a.I(f"s_lshl_b32 s{sT0}, s{sT0}, 3")
    a.I(f"s_add_u32 s{sT0}, s{sT0}, s{sSPL}")
    a.I(f"s_mul_i32 s{sT0}, s{sT0}, 1152")
    a.I(f"s_add_u32 s{sT0}, s{sT0}, {WS_OP}")
    a.I("s_waitcnt lgkmcnt(0)")
    vMM = vT + 2
    a.I(f"v_max3_f32 v{vMM}, v{ml}, v{ml+2}, v{ml+4}")
    a.I(f"v_max3_f32 v{vMM}, v{vMM}, v{ml+6}, v{ml+8}")
    a.I(f"v_max3_f32 v{vMM}, v{vMM}, v{ml+10}, v{ml+12}")
    a.I(f"v_max_f32 v{vMM}, v{vMM}, v{ml+14}")
    for w in range(8):
        a.I(f"v_sub_f32 v{ml+2*w}, v{ml+2*w}, v{vMM}")
    for w in range(8):
        a.I(f"v_mul_f32 v{ml+2*w}, s{sL2E}, v{ml+2*w}")
    for w in range(8):
        a.I(f"v_exp_f32 v{ml+2*w}, v{ml+2*w}")
    og, mg = rC, rC + 4
    for r in range(4):
        a.I(f"v_mul_f32 v{og+r}, v{rA+r}, v{ml}")
    a.I(f"v_mul_f32 v{mg+1}, v{ml+1}, v{ml}")
    for w in range(1, 8):
        for r in range(4):
            a.I(f"v_fmac_f32 v{og+r}, v{rA+4*w+r}, v{ml+2*w}")
        a.I(f"v_fmac_f32 v{mg+1}, v{ml+2*w+1}, v{ml+2*w}")
    a.I(f"v_mov_b32 v{mg}, v{vMM}")
    a.I(f"v_mov_b32 v{mg+2}, 0")
    a.I(f"v_mov_b32 v{mg+3}, 0")
    tagit(og)
    tagit(mg)
    publish(og, vVO, sT0)
    a.I(f"v_lshlrev_b32 v{vT}, 1, v{vT}")
    a.I(f"v_and_b32 v{vT+1}, 0x37, v{vLANE}")
    a.I(f"v_cmp_eq_u32 vcc, 0, v{vT+1}")
    a.I(f"s_and_saveexec_b64 s[{sM0}:{sM0+1}], vcc")
    publish(mg, vT, sT0, "offset:1024")
    a.I(f"s_mov_b64 exec, s[{sM0}:{sM0+1}]")
    stamp("opub")
    a.label(lbl)
    vHA, vHT, sHA = rC, rC + 1, sQO
    lbl = role("eq", 0)
    a.I(f"v_lshrrev_b32 v{vT}, 2, v{vLANE}")
    a.I(f"v_lshrrev_b32 v{vT+1}, 3, v{vT}")
    a.I(f"v_and_b32 v{vT+2}, 7, v{vT}")
    a.I(f"v_lshl_add_u32 v{vT+2}, v{vT+1}, 7, v{vT+2}")
    a.I(f"v_mul_u32_u24 v{vT+2}, 1152, v{vT+2}")
    a.I(f"s_lshl_b32 s{sT0}, s{sKVH}, 3")
    a.I(f"s_mul_i32 s{sT0}, s{sT0}, 1152")
    a.I(f"s_add_u32 s{sT0}, s{sT0}, {WS_OP}")
    a.I(f"s_lshl_b32 s{sT1}, s{sB}, 4")
    a.I(f"v_add_u32 v{vT+3}, s{sT1}, v{vT+2}")
    a.I(f"s_lshl_b32 s{sT1}, s{sB}, 3")
    a.I(f"s_add_u32 s{sT1}, s{sT1}, s{sSPL}")
    a.I(f"s_lshl_b32 s{sT1}, s{sT1}, 4")
    a.I(f"v_and_b32 v{vT+4}, 3, v{vLANE}")
    a.I(f"v_lshl_add_u32 v{vT+2}, v{vT+4}, 8, v{vT+2}")
    a.I(f"v_add_u32 v{vT+2}, s{sT1}, v{vT+2}")
    a.label(lbl)
    lbl = role("eq", 3)
    a.I(f"v_lshrrev_b32 v{vHA}, 5, v{vLANE}")
    a.I(f"v_lshlrev_b32 v{vHA}, 11, v{vHA}")
    a.I(f"v_bfe_u32 v{vT+1}, v{vLANE}, 4, 1")
    a.I(f"v_lshl_add_u32 v{vHA}, v{vT+1}, 10, v{vHA}")
    a.I(f"v_bfe_u32 v{vT+1}, v{vLANE}, 2, 2")
    a.I(f"v_lshl_add_u32 v{vHA}, v{vT+1}, 8, v{vHA}")
    a.I(f"v_bfe_u32 v{vT+2}, v{vLANE}, 1, 1")
    a.I(f"v_lshl_add_u32 v{vHA}, v{vT+2}, 7, v{vHA}")
    a.I(f"v_and_b32 v{vT+3}, 1, v{vLANE}")
    a.I(f"v_lshl_add_u32 v{vHA}, v{vT+3}, 4, v{vHA}")
    a.I(f"s_lshl_b32 s{sHA}, s{sCS}, 13")
    a.I(f"s_lshl_b32 s{sT1}, s{sFR}, 5")
    a.I(f"s_add_u32 s{sHA}, s{sHA}, s{sT1}")
    a.I(f"s_add_u32 s{sHA}, s{sHA}, {WS_HP}")
    a.I(f"s_add_u32 s{sHA+1}, s{sHA}, 4096")
    a.I(f"v_mul_u32_u24 v{vHT}, 160, v{vT+2}")
    a.I(f"v_lshl_add_u32 v{vHT}, v{vT+1}, 5, v{vHT}")
    a.I(f"v_lshl_add_u32 v{vHT}, v{vT+3}, 2, v{vHT}")
    a.label(lbl)
    OG, MG = rA, rA + 4
    H0, H1 = rB, rB + 4
    mko = lambda so: [f"buffer_load_dwordx4 v[{OG}:{OG+3}], v{vT+2}, s[{sWS}:{sWS+3}], s{so[0]} offen sc1",
                      f"buffer_load_dwordx4 v[{MG}:{MG+3}], v{vT+3}, s[{sWS}:{sWS+3}], s{so[0]} offen offset:1024 sc1"]
    mkh = lambda so: [f"buffer_load_dwordx4 v[{H0}:{H0+3}], v{vHA}, s[{sWS}:{sWS+3}], s{so[0]} offen sc1",
                      f"buffer_load_dwordx4 v[{H0+4}:{H0+7}], v{vHA}, s[{sWS}:{sWS+3}], s{so[1]} offen sc1"]
    a.I("s_barrier")
    if P["og_at"] == "B6":
        lbl = role("eq", 0)
        gather_issue(mko, [sT0])
        a.label(lbl)
    lbl = role("ge", 2)
    a.I(f"s_sub_u32 s{sT1}, s{sWAVE}, 2")
    a.I(f"s_lshl_b32 s{sT2}, s{sT1}, 12")
    a.I(f"v_add_u32 v{vT}, s{sT2}, v{vVO}")
    for w in range(4):
        a.I(f"ds_read_b128 v[{rA+4*w}:{rA+4*w+3}], v{vT} offset:{L_RG + w*1024}")
    a.I(f"s_lshl_b32 s{sT0}, s{sCS}, 2")
    a.I(f"s_add_u32 s{sT0}, s{sT0}, s{sFR}")
    a.I(f"s_lshl_b32 s{sT0}, s{sT0}, 11")
    a.I(f"s_lshl_b32 s{sT1}, s{sT1}, 10")
    a.I(f"s_add_u32 s{sT0}, s{sT0}, s{sT1}")
    a.I(f"s_add_u32 s{sT0}, s{sT0}, {WS_HP}")
    for w in range(1, 4):
        a.I(f"s_waitcnt lgkmcnt({3-w})")
        for r in range(4):
            a.I(f"v_add_f32 v{rA+r}, v{rA+r}, v{rA+4*w+r}")
    tagit(rA)
    publish(rA, vVO, sT0)
    stamp("hpub")
    a.label(lbl)
    a.I("s_barrier")
    if P["og_at"] == "B6b":
        lbl = role("eq", 0)
        gather_issue(mko, [sT0])
        a.label(lbl)
    lbl = role("eq", 3)
    a.I(f"v_cmp_gt_u32 vcc, 12, v{vI}")
    a.I(f"s_and_saveexec_b64 s[{sM0+4}:{sM0+5}], vcc")
    a.I("s_barrier")
    gather_issue(mkh, [sHA, sHA + 1])
    stamp("hflag")
    a.I("s_barrier")
    lo = L("H3J")
    a.I(f"s_branch {lo}")
    a.label(lbl)
    a.I("s_barrier")
    if P["og_at"] == "B6c":
        lbl = role("eq", 0)
        gather_issue(mko, [sT0])
        a.label(lbl)
    a.I("s_barrier")
    a.label(lo)
    lbl = role("eq", 0)
    gather_loop("OG", mko, [sT0], [OG, MG], P.get("og_retry_sleep", 0), preissued=True)
    stamp("og")
    untag(OG)
    untag(MG, 2)
    a.I(f"v_mov_b32 v{vT+5}, v{MG}")
    a.I(f"v_max_f32_dpp v{vT+5}, v{vT+5}, v{vT+5} row_ror:4 {DPPM}")
    a.I(f"v_max_f32_dpp v{vT+5}, v{vT+5}, v{vT+5} row_ror:8 {DPPM}")
    a.I(f"v_mov_b32 v{vT+6}, v{vT+5}")
    a.I(f"v_permlane16_swap_b32 v{vT+5}, v{vT+6}")
    a.I(f"v_max_f32 v{vT+5}, v{vT+5}, v{vT+6}")
    a.I(f"v_sub_f32 v{vT+6}, v{MG}, v{vT+5}")
    a.I(f"v_mul_f32 v{vT+6}, s{sL2E}, v{vT+6}")
    a.I(f"v_exp_f32 v{vT+6}, v{vT+6}")
    vals = [OG, OG + 1, OG + 2, OG + 3, MG + 1]
    for r in vals:
        a.I(f"v_mul_f32 v{r}, v{r}, v{vT+6}")
    for r in vals:
        a.I(f"v_add_f32_dpp v{r}, v{r}, v{r} row_ror:4 {DPPM}")
    for r in vals:
        a.I(f"v_add_f32_dpp v{r}, v{r}, v{r} row_ror:8 {DPPM}")
    for k, r in enumerate(vals):
        a.I(f"v_mov_b32 v{rA+8+k}, v{r}")
    for k, r in enumerate(vals):
        a.I(f"v_permlane16_swap_b32 v{r}, v{rA+8+k}")
    for k, r in enumerate(vals):
        a.I(f"v_add_f32 v{r}, v{r}, v{rA+8+k}")
    a.I(f"v_rcp_f32 v{MG+1}, v{MG+1}")
    for r in range(4):
        a.I(f"v_mul_f32 v{OG+r}, v{OG+r}, v{MG+1}")
    for r in range(4):
        a.I(f"v_cvt_pk_bf16_f32 v{OG+r}, v{OG+r}, v{OG+r}")
    a.I(f"v_lshrrev_b32 v{vT}, 5, v{vLANE}")
    a.I(f"v_mul_u32_u24 v{vT}, 160, v{vT}")
    a.I(f"v_lshl_add_u32 v{vT}, v{vT+4}, 4, v{vT}")
    a.I(f"v_and_b32 v{vT+1}, 0x1c, v{vLANE}")
    a.I(f"v_cmp_eq_u32 vcc, 0, v{vT+1}")
    a.I(f"s_and_saveexec_b64 s[{sM0}:{sM0+1}], vcc")
    a.I(f"ds_write_b128 v{vT}, v[{OG}:{OG+3}] offset:{L_TA}")
    a.I(f"s_mov_b64 exec, s[{sM0}:{sM0+1}]")
    a.label(lbl)
    lbl = role("eq", 3)
    gather_loop("HG", mkh, [sHA, sHA + 1], [H0, H1], P.get("hg_retry_sleep", 0), preissued=True, pipe=P["hgpipe"])
    stamp("hg")
    a.I(f"s_mov_b64 exec, s[{sM0+4}:{sM0+5}]")
    for c in range(8):
        a.I(f"v_and_b32 v{rB+8+c}, s{sHI}, v{H0+c}")
    H0, H1 = rB + 8, rB + 12
    for r in range(4):
        a.I(f"v_add_f32 v{H0+r}, v{H0+r}, v{H1+r}")
    for r in range(4):
        a.I(f"v_mov_b32 v{H1+r}, v{H0+r}")
    for r in range(4):
        a.I(f"v_permlane32_swap_b32 v{H0+r}, v{H1+r}")
    for r in range(4):
        a.I(f"v_add_f32 v{H0+r}, v{H0+r}, v{H1+r}")
    for r in range(4):
        a.I(f"v_mov_b32 v{H1+r}, v{H0+r}")
    for r in range(4):
        a.I(f"v_permlane16_swap_b32 v{H0+r}, v{H1+r}")
    for r in range(4):
        a.I(f"v_cvt_pk_bf16_f32 v{H0+r}, v{H0+r}, v{H1+r}")
    for r in range(4):
        a.I(f"v_lshlrev_b32 v{H1+r}, 16, v{H0+r}")
        a.I(f"v_and_b32 v{H0+r}, 0xffff0000, v{H0+r}")
    for r in range(4):
        a.I(f"v_max_f32 v{H1+r}, 0, v{H1+r}")
    for r in range(4):
        a.I(f"v_mul_f32 v{H0+r}, v{H0+r}, v{H1+r}")
    for r in range(4):
        a.I(f"v_cvt_pk_bf16_f32 v{H0+r}, v{H0+r}, v{H0+r}")
    a.I(f"v_cmp_gt_u32 vcc, 12, v{vLANE}")
    a.I(f"s_and_saveexec_b64 s[{sM0}:{sM0+1}], vcc")
    for r in range(4):
        a.I(f"ds_write_b32 v{vHT}, v{H0+r} offset:{L_TA + 64 + r*8}")
    a.I(f"s_mov_b64 exec, s[{sM0}:{sM0+1}]")
    a.label(lbl)
    a.I("s_waitcnt lgkmcnt(0)")
    a.I("s_barrier")
    stamp("B7")
    a.I("s_branch FIN")

    a.raw("; @@SERVICE_END")
    a.hist = []
    a.label("STREAM")
    vm = VM(a)
    a.I(f"s_sub_u32 s{sWAVE}, s{sWAVE}, 4")
    a.I(f"v_subrev_u32 v{vWAVE}, 4, v{vWAVE}")
    a.I(f"v_subrev_u32 v{vTID}, 256, v{vTID}")
    a.I(f"v_lshlrev_b32 v{vQOFF}, 13, v{vG}")
    a.I(f"v_lshl_add_u32 v{vQOFF}, v{vI}, 4, v{vQOFF}")
    qi = P["qmap"] == "inter"
    if qi:
        a.I(f"s_lshl_b32 s{sQO}, s{sWAVE}, 3")
        a.I(f"s_add_u32 s{sQO}, s{sQO}, s{sSPL}")
        a.I(f"s_lshl_b32 s{sQO}, s{sQO}, 2")
    else:
        a.I(f"s_mul_i32 s{sQO}, s{sSPL}, 72")
        a.I(f"s_lshl_b32 s{sT0}, s{sWAVE}, 2")
        a.I(f"s_add_u32 s{sQO}, s{sQO}, s{sT0}")
    qstep = 256 if qi else 32
    a.I(f"s_lshl_b32 s{sT2}, s{sQO}, 2")
    a.I(f"s_lshl_b32 s{sQO}, s{sQO}, 13")
    a.I(f"s_lshl_b32 s{sT0}, s{sKVH}, 1")
    a.I(f"s_add_u32 s{sT0}, s{sT0}, s{sB}")
    a.I(f"s_lshl_b32 s{sT0}, s{sT0}, 8")
    a.I(f"s_add_u32 s{sQO}, s{sQO}, s{sT0}")
    a.I(f"s_add_u32 s{sQO+1}, s{sQO}, {qstep*8192}")
    a.I(f"s_add_u32 s{sQO+2}, s{sQO}, {2*qstep*8192}")
    a.I(f"s_cmp_lt_u32 s{sWAVE}, 2")
    a.I(f"s_cselect_b32 s{sQO+2}, s{sQO+2}, {OOB}")
    a.I(f"s_lshl_b32 s{sKV0}, s{sB}, 4")
    a.I(f"s_add_u32 s{sKV0}, s{sKV0}, s{sKVH}")
    a.I(f"s_lshl_b32 s{sKV0}, s{sKV0}, 21")
    sh_s, sh_v = dict(fine=(10, 13), group=(13, 10))[P["kvmap"]]
    a.I(f"s_lshl_b32 s{sT0}, s{sSPL}, {sh_s}")
    a.I(f"s_add_u32 s{sKV0}, s{sKV0}, s{sT0}")
    a.I(f"s_lshl_b32 s{sT0}, s{sWAVE}, {sh_v}")
    a.I(f"s_add_u32 s{sKV0}, s{sKV0}, s{sT0}")
    a.I(f"s_add_u32 s{sKV0}, s{sKV0}, {6144*256}")
    sROT = sOS
    if P["rot"] == "pair":
        a.I(f"s_lshl_b32 s{sROT}, s{sB}, 2")
        a.I(f"s_add_u32 s{sROT}, s{sROT}, s{sKVH}")
    elif P["rot"] == "kvh":
        a.I(f"s_mov_b32 s{sROT}, s{sKVH}")
    elif P["rot"] == "half":
        a.I(f"s_lshr_b32 s{sROT}, s{sKVH}, 1")
        a.I(f"s_lshl_b32 s{sT0}, s{sB}, 2")
        a.I(f"s_add_u32 s{sROT}, s{sROT}, s{sT0}")
    a.I(f"v_lshrrev_b32 v{vKO}, 2, v{vI}")
    a.I(f"v_lshlrev_b32 v{vKO}, 8, v{vKO}")
    a.I(f"v_and_b32 v{vT+1}, 3, v{vI}")
    a.I(f"v_lshl_add_u32 v{vT+1}, v{vG}, 2, v{vT+1}")
    a.I(f"v_lshl_add_u32 v{vKO}, v{vT+1}, 4, v{vKO}")
    a.I("s_waitcnt lgkmcnt(0)")
    a.I(f"s_load_dword s{sE}, s[{sWS}:{sWS+1}], {WS_EPOCH}")

    rQ = rB
    def load_Q(k):
        vm.issue(f"Q{k}", f"buffer_load_dwordx4 v[{rQ+4*k}:{rQ+4*k+3}], v{vQOFF}, s[{sWQ}:{sWQ+3}], s{sQO+k} offen nt")
    def kv_off(n):
        if P["rot"]:
            a.I(f"s_add_u32 s{sKV1}, s{sROT}, {n}")
            a.I(f"s_and_b32 s{sKV1}, s{sKV1}, 7")
            a.I(f"s_lshl_b32 s{sKV1}, s{sKV1}, 16")
            a.I(f"s_add_u32 s{sKV1}, s{sKV1}, s{sKV0}")
            return sKV1
        if n:
            a.I(f"s_add_u32 s{sKV1}, s{sKV0}, {n*65536}")
            return sKV1
        return sKV0
    def load_K(n):
        so = kv_off(n)
        vm.issue(f"K{n}", f"buffer_load_dwordx4 v[{rA+4*n}:{rA+4*n+3}], v{vKO}, s[{sK}:{sK+3}], s{so} offen nt")
    def load_V(n):
        so = kv_off(n)
        vm.issue(f"V{n}", f"buffer_load_dwordx4 v[{rB+4*n}:{rB+4*n+3}], v{vVO}, s[{sV}:{sV+3}], s{so} offen nt")
    def regG(n):
        return rC + 4 * n if n < 4 else rB + 4 * (n - 4)
    def load_G(n):
        if n > 0:
            a.I(f"s_add_u32 s{sGO}, s{sGO}, {dict(stride9=1, contig=16, inter=64)[P['gmap']]*9216}")
        vm.issue(f"G{n}", f"buffer_load_dwordx4 v[{regG(n)}:{regG(n)+3}], v{vGOFF}, s[{sGS}:{sGS+3}], s{sGO} offen")
    def regO(n):
        return rA + 4 * n if n < 8 else rC
    def load_O(n):
        r = regO(n)
        if n < 4:
            if n: a.I(f"s_add_u32 s{sOO}, s{sOO}, {32*1152}")
            vm.issue(f"O{n}", f"buffer_load_dwordx4 v[{r}:{r+3}], v{vOOFF}, s[{sWO}:{sWO+3}], s{sOO} offen nt")
        elif n < 8:
            if n > 4: a.I(f"s_add_u32 s{sOX}, s{sOX}, {16*1152}")
            vm.issue(f"O{n}", f"buffer_load_dwordx4 v[{r}:{r+3}], v{vO4}, s[{sWD}:{sWD+3}], s{sOX} offen nt")
        else:
            a.I(f"s_add_u32 s{sOX}, s{sOX}, {16*1152}")
            vm.issue(f"O{n}", f"buffer_load_dwordx4 v[{r}:{r+3}], v{vOX}, s[{sWD}:{sWD+3}], s{sOX} offen nt")

    if P.get("xfirst", True):
        pass
    nib = [0]
    def ibar():
        if nib[0] < P["nib"]:
            a.I("s_barrier")
            nib[0] += 1
    load_Q(0)
    a.I(f"v_and_b32 v{vT+1}, 1, v{vI}")
    a.I(f"v_mov_b32 v{vT+2}, 0xffff")
    a.I(f"v_mov_b32 v{vT+3}, 0xffff0000")
    a.I(f"v_cmp_eq_u32 vcc, 1, v{vT+1}")
    a.I(f"v_cndmask_b32 v{vT+2}, v{vT+2}, v{vT+3}, vcc")
    a.I(f"v_bfe_u32 v{vT+1}, v{vI}, 1, 2")
    for r in range(4):
        a.I(f"v_cmp_eq_u32 vcc, {r}, v{vT+1}")
        a.I(f"v_cndmask_b32 v{vM+r}, 0, v{vT+2}, vcc")
    ibar()
    load_Q(1)
    a.I(f"v_lshrrev_b32 v{vT+1}, 3, v{vI}")
    a.I(f"v_mul_u32_u24 v{vT+2}, 576, v{vT+1}")
    a.I(f"v_add_lshl_u32 v{vT+2}, v{vT+2}, v{vG}, 2")
    a.I(f"v_add_u32 v{vPQ}, s{sT2}, v{vT+2}")
    g9 = P["gmap"] == "stride9"
    gin = P["gmap"] == "inter"
    a.I(f"s_and_b32 s{sT0}, s{sWAVE}, 3")
    a.I(f"s_mul_i32 s{sT0}, s{sT0}, {36 if g9 else (16 if gin else 4)}")
    a.I(f"s_mul_i32 s{sT1}, s{sFR}, {4 if gin else 144}")
    a.I(f"s_add_u32 s{sT0}, s{sT0}, s{sT1}")
    a.I(f"s_mul_i32 s{sGO}, s{sT0}, 9216")
    a.I(f"s_mul_i32 s{sT1}, s{sCS}, 144")
    a.I(f"s_add_u32 s{sGO}, s{sGO}, s{sT1}")
    a.I(f"s_lshl_b32 s{sT0}, s{sT0}, 2")
    a.I(f"v_mul_u32_u24 v{vT+2}, 576, v{vT+1}")
    a.I(f"v_mul_u32_u24 v{vT+3}, {9 if g9 else 1}, v{vG}")
    a.I(f"v_add_lshl_u32 v{vT+2}, v{vT+2}, v{vT+3}, 2")
    a.I(f"v_add_u32 v{vPG}, s{sT0}, v{vT+2}")
    ibar()
    load_Q(2)
    a.I(f"v_mul_u32_u24 v{vGOFF}, {(9 if g9 else 1)*9216}, v{vG}")
    a.I(f"v_lshl_add_u32 v{vGOFF}, v{vI}, 4, v{vGOFF}")
    a.I(f"v_mov_b32 v{vT+3}, {OOB}")
    a.I(f"v_cmp_gt_u32 vcc, 9, v{vI}")
    a.I(f"v_cndmask_b32 v{vGOFF}, v{vT+3}, v{vGOFF}, vcc")
    a.I(f"s_cmp_ge_u32 s{sWAVE}, 4")
    for c in range(4):
        a.I(f"s_cselect_b32 s{sGS+c}, s{sWU+c}, s{sWG+c}")
    ibar()
    load_K(0)
    assert nib[0] == P["nib"], (nib, P["nib"])
    a.I(f"s_lshl_b32 s{sT0}, s{sKVH}, 8")
    a.I(f"s_lshl_b32 s{sT1}, s{sB}, 7")
    a.I(f"s_add_u32 s{sT0}, s{sT0}, s{sT1}")
    a.I(f"s_add_u32 s{sT0}, s{sT0}, s{sSPL}")
    a.I(f"s_mul_i32 s{sOO}, s{sT0}, 1152")
    a.I(f"s_mul_i32 s{sT1}, s{sCS}, 72")
    a.I(f"s_lshl_b32 s{sT2}, s{sFR}, 1")
    a.I(f"s_add_u32 s{sT1}, s{sT1}, s{sT2}")
    a.I(f"s_mul_i32 s{sOX}, s{sT1}, 1152")
    a.I(f"s_lshl_b32 s{sT2}, s{sWAVE}, 8")
    a.I(f"s_cmp_lt_u32 s{sWAVE}, 5")
    a.I(f"s_cselect_b32 s{sT2}, s{sT2}, {OOB}")
    a.I(f"s_add_u32 s{sOO}, s{sOO}, s{sT2}")
    a.I(f"s_add_u32 s{sOX}, s{sOX}, s{sT2}")
    a.I(f"v_mul_u32_u24 v{vOOFF}, {8*1152}, v{vG}")
    a.I(f"v_lshl_add_u32 v{vOOFF}, v{vI}, 4, v{vOOFF}")
    a.I(f"v_lshrrev_b32 v{vT+3}, 1, v{vG}")
    a.I(f"v_lshlrev_b32 v{vT+3}, 3, v{vT+3}")
    a.I(f"v_and_b32 v{vT+4}, 1, v{vG}")
    a.I(f"v_add_u32 v{vT+3}, v{vT+3}, v{vT+4}")
    a.I(f"v_mul_u32_u24 v{vO4}, 1152, v{vT+3}")
    a.I(f"v_lshl_add_u32 v{vO4}, v{vI}, 4, v{vO4}")
    a.I(f"v_mul_u32_u24 v{vOX}, 1152, v{vT+4}")
    a.I(f"v_lshl_add_u32 v{vOX}, v{vI}, 4, v{vOX}")
    a.I(f"v_mov_b32 v{vT+3}, {OOB}")
    a.I(f"v_cmp_gt_u32 vcc, 32, v{vLANE}")
    a.I(f"v_cndmask_b32 v{vOX}, v{vT+3}, v{vOX}, vcc")
    a.I(f"s_cmp_eq_u32 s{sWAVE}, 4")
    a.I(f"s_cselect_b32 s{sT0}, 8, 16")
    a.I(f"v_cmp_gt_u32 vcc, s{sT0}, v{vI}")
    a.I(f"v_cndmask_b32 v{vOOFF}, v{vT+3}, v{vOOFF}, vcc")
    a.I(f"v_cndmask_b32 v{vO4}, v{vT+3}, v{vO4}, vcc")
    a.I(f"v_cndmask_b32 v{vOX}, v{vT+3}, v{vOX}, vcc")
    a.I(f"v_mul_u32_u24 v{vPA}, 40, v{vT+1}")
    a.I(f"v_add_lshl_u32 v{vPA}, v{vPA}, v{vG}, 2")
    a.I(f"v_add_u32 v{vPA}, {L_TA}, v{vPA}")
    a.I(f"s_mov_b32 s{sSCALE}, {f2h(128 ** -0.5):#x}")
    vm.wait("Q0")
    load_K(1)
    vm.wait("Q1")
    load_K(2)
    vm.wait("Q2")
    load_K(3)
    a.I("s_waitcnt lgkmcnt(0)")
    make_tag()
    a.I("s_barrier")
    stamp("B0")
    for k in range(3):
        a.I(f"ds_read_b32 v{vT+k}, v{vPQ} offset:{L_TX + k*qstep*4}")
    a.I(f"s_cmp_lt_u32 s{sWAVE}, 2")
    a.I(f"s_cselect_b32 s{sT0}, -1, 0")
    if not P["k4late"]:
        vm.wait("K0")
        load_K(4)
    a.I("s_waitcnt lgkmcnt(0)")
    a.I(f"v_and_b32 v{vT+2}, s{sT0}, v{vT+2}")
    for k in range(3):
        bb = vBA if k % 2 == 0 else vBB
        for r in range(4):
            a.I(f"v_and_b32 v{bb+r}, v{vT+k}, v{vM+r}")
        cc = "0" if k == 0 else f"v[{accQ}:{accQ+3}]"
        a.I(f"v_mfma_f32_16x16x32_bf16 v[{accQ}:{accQ+3}], v[{rQ+4*k}:{rQ+4*k+3}], v[{bb}:{bb+3}], {cc}")
    a.I(f"v_lshlrev_b32 v{vT+3}, 4, v{vTID}")
    a.I(f"ds_write_b128 v{vT+3}, v[{accQ}:{accQ+3}] offset:{L_RQ}")
    a.I("s_waitcnt lgkmcnt(0)")
    a.I("s_barrier")
    stamp("B1")
    if P["k4late"]:
        vm.wait("K0")
        load_K(4)
    for n in range(5, 8):
        vm.wait(f"K{n-4}")
        load_K(n)
        if P["qflag"] == f"K{n-4}": set_flag(0)
    for n in range(0, 4):
        vm.wait(f"K{n+4}")
        if n == 3: stamp("k7")
        load_V(n)
        if P["qflag"] == f"K{n+4}": set_flag(0)
    gs = dict(stride9=1, contig=16, inter=64)[P["gmap"]]
    if gs <= 16:
        for n in range(0, 8, 2):
            a.I(f"ds_read2_b32 v[{vPGv+n}:{vPGv+n+1}], v{vPG} offset0:{n*gs} offset1:{(n+1)*gs}")
        a.I(f"ds_read_b32 v{vPGv+8}, v{vPG} offset:{32*gs}")
    else:
        for n in range(9):
            a.I(f"ds_read_b32 v{vPGv+n}, v{vPG} offset:{4*n*gs}")
    for n in range(4, 8):
        vm.wait(f"V{n-4}")
        load_V(n)
    stamp("v3")
    if P["g0early"]:
        vm.wait("V4")
        load_G(0)
    a.I("s_waitcnt lgkmcnt(0)")
    a.I("s_barrier")
    stamp("B3")
    a.I(f"v_lshrrev_b32 v{vT}, 3, v{vI}")
    a.I(f"v_lshlrev_b32 v{vT}, 8, v{vT}")
    a.I(f"v_and_b32 v{vT+1}, 3, v{vI}")
    a.I(f"v_lshl_add_u32 v{vT+1}, v{vG}, 2, v{vT+1}")
    a.I(f"v_lshl_add_u32 v{vT}, v{vT+1}, 4, v{vT}")
    QB = vT + 4
    a.I(f"ds_read_b128 v[{QB}:{QB+3}], v{vT} offset:{L_QL}")
    if not P["g0early"]:
        vm.wait("V4")
        load_G(0)
    a.I("s_waitcnt lgkmcnt(0)")
    for h in range(2):
        for n in range(4):
            k = 4 * h + n
            a.I(f"v_mfma_f32_16x16x32_bf16 v[{vD+4*n}:{vD+4*n+3}], v[{rA+4*k}:{rA+4*k+3}], v[{QB}:{QB+3}], 0")
        for n in range(4):
            a.I(f"v_mov_b32_dpp v{vS+4*h+n}, v{vD+4*n} quad_perm:[0,0,0,0] {DPPM}")
        for c in range(1, 4):
            for n in range(4):
                a.I(f"v_add_f32_dpp v{vS+4*h+n}, v{vD+4*n+c}, v{vS+4*h+n} quad_perm:[{c},{c},{c},{c}] {DPPM}")
    stamp("dpp")
    vm.wait("V5")
    load_G(1)
    stamp("g1")
    for n in range(0, 8, 2):
        a.I(f"v_cvt_pk_bf16_f32 v{vD+n}, v{vS+n}, v{vS+n+1}")
    for n in range(0, 8, 2):
        a.I(f"v_lshlrev_b32 v{vS+n}, 16, v{vD+n}")
        a.I(f"v_and_b32 v{vS+n+1}, 0xffff0000, v{vD+n}")
    for n in range(8):
        a.I(f"v_mul_f32 v{vS+n}, s{sSCALE}, v{vS+n}")
    for n in range(0, 8, 2):
        a.I(f"v_cvt_pk_bf16_f32 v{vD+n}, v{vS+n}, v{vS+n+1}")
    for n in range(0, 8, 2):
        a.I(f"v_lshlrev_b32 v{vS+n}, 16, v{vD+n}")
        a.I(f"v_and_b32 v{vS+n+1}, 0xffff0000, v{vD+n}")
    vMX, vLS = vT + 8, vT + 9
    assert vMX % 2 == 0
    a.I(f"v_max3_f32 v{vMX}, v{vS}, v{vS+1}, v{vS+2}")
    a.I(f"v_max3_f32 v{vT}, v{vS+3}, v{vS+4}, v{vS+5}")
    a.I(f"v_max3_f32 v{vMX}, v{vMX}, v{vS+6}, v{vS+7}")
    a.I(f"v_max_f32 v{vMX}, v{vMX}, v{vT}")
    xrow_reduce(a, "v_max_f32", vMX, vT)
    stamp("max")
    vm.wait("V6")
    load_G(2)
    stamp("g2")
    a.I(f"v_mul_f32 v{vT}, s{sL2E}, v{vMX}")
    for n in range(8):
        a.I(f"v_fma_f32 v{vS+n}, v{vS+n}, s{sL2E}, -v{vT}")
    for n in range(8):
        a.I(f"v_exp_f32 v{vS+n}, v{vS+n}")
    a.I(f"v_add_f32 v{vLS}, v{vS}, v{vS+1}")
    a.I(f"v_add_f32 v{vT}, v{vS+2}, v{vS+3}")
    a.I(f"v_add_f32 v{vT+1}, v{vS+4}, v{vS+5}")
    a.I(f"v_add_f32 v{vT+2}, v{vS+6}, v{vS+7}")
    for n in range(8):
        a.I(f"v_cvt_pk_bf16_f32 v{vS+n}, v{vS+n}, v{vS+n}")
    a.I(f"v_add_f32 v{vLS}, v{vLS}, v{vT}")
    a.I(f"v_add_f32 v{vT+1}, v{vT+1}, v{vT+2}")
    a.I(f"v_add_f32 v{vLS}, v{vLS}, v{vT+1}")
    for n in range(8):
        for r in range(4):
            a.I(f"v_and_b32 v{rA+4*n+r}, v{vS+n}, v{vM+r}")
        if n < 7:
            cc = "0" if n == 0 else f"v[{accO}:{accO+3}]"
            a.I(f"v_mfma_f32_16x16x32_bf16 v[{accO}:{accO+3}], v[{rB+4*n}:{rB+4*n+3}], v[{rA+4*n}:{rA+4*n+3}], {cc}")
    xrow_reduce(a, "v_add_f32", vLS, vT)
    a.I(f"v_lshrrev_b32 v{vT}, 3, v{vI}")
    a.I(f"v_lshlrev_b32 v{vT}, 3, v{vT}")
    a.I(f"v_lshl_add_u32 v{vT}, v{vWAVE}, 4, v{vT}")
    a.I(f"ds_write_b64 v{vT}, v[{vMX}:{vLS}] offset:{L_ML}")
    stamp("pv6")
    vm.wait("V7")
    stamp("v7")
    load_G(3)
    a.I(f"v_mfma_f32_16x16x32_bf16 v[{accO}:{accO+3}], v[{rB+28}:{rB+31}], v[{rA+28}:{rA+31}], v[{accO}:{accO+3}]")
    a.I(f"v_lshlrev_b32 v{vT+3}, 4, v{vTID}")
    a.I(f"ds_write_b128 v{vT+3}, v[{accO}:{accO+3}] offset:{L_RO}")
    a.I("s_waitcnt lgkmcnt(0)")
    a.I("s_barrier")
    stamp("B5")

    def g_mfma(n):
        bb = vBA if n % 2 == 0 else vBB
        for r in range(4):
            a.I(f"v_and_b32 v{bb+r}, v{vPGv+n}, v{vM+r}")
        cc = "0" if n == 0 else f"v[{accG}:{accG+3}]"
        a.I(f"v_mfma_f32_16x16x32_bf16 v[{accG}:{accG+3}], v[{regG(n)}:{regG(n)+3}], v[{bb}:{bb+3}], {cc}")

    for n in range(4, 9):
        vm.wait(f"G{n-4}")
        load_G(n)
        g_mfma(n - 4)
    on = 0
    for n in range(0, 4):
        vm.wait(f"G{n+5}")
        for _ in range(P["opre"][n]):
            load_O(on); on += 1
        g_mfma(n + 5)
    a.I(f"v_lshlrev_b32 v{vT+3}, 4, v{vTID}")
    a.I(f"ds_write_b128 v{vT+3}, v[{accG}:{accG+3}] offset:{L_RG}")
    a.I(f"s_mul_i32 s{sKV1}, s2, 4608")
    a.I(f"s_add_u32 s{sKV1}, s{sKV1}, {WS_FP}")
    a.I("s_waitcnt lgkmcnt(0)")
    a.I("s_barrier")
    stamp("B6")
    a.I("s_barrier")
    for _ in range(P["nmid"]):
        load_O(on); on += 1
    if P["gwait"] is not None:
        vm.wait(P["gwait"])
    a.I("s_barrier")
    stamp("B6c")
    a.I("s_barrier")
    while on < 9:
        load_O(on); on += 1
    a.I(f"v_cmp_gt_u32 vcc, 288, v{vTID}")
    a.I(f"s_mov_b64 s[{sM0}:{sM0+1}], vcc")
    a.I("s_barrier")
    stamp("B7s")
    for n in range(0, 8, 2):
        a.I(f"ds_read2_b32 v[{vPGv+n}:{vPGv+n+1}], v{vPA} offset0:{(L_TA >> 2) - (L_TA >> 2) + 4*n} offset1:{4*n+4}" if False else
            f"ds_read2_b32 v[{vPGv+n}:{vPGv+n+1}], v{vPA} offset0:{4*n} offset1:{4*n+4}")
    a.I(f"ds_read_b32 v{vPGv+8}, v{vPA} offset:128")
    for n in range(9):
        if n % 2 == 0:
            a.I(f"s_waitcnt lgkmcnt({max(4 - n // 2, 0)})")
        bb = vBA if n % 2 == 0 else vBB
        for r in range(4):
            a.I(f"v_and_b32 v{bb+r}, v{vPGv+n}, v{vM+r}")
        vm.wait(f"O{n}")
        cc = "0" if n == 0 else f"v[{accF}:{accF+3}]"
        a.I(f"v_mfma_f32_16x16x32_bf16 v[{accF}:{accF+3}], v[{regO(n)}:{regO(n)+3}], v[{bb}:{bb+3}], {cc}")
    stamp("B8")
    lbl = role("lt", 5)
    a.I(f"s_mov_b64 exec, s[{sM0}:{sM0+1}]")
    tagit(accF)
    a.I(f"buffer_store_dwordx4 v[{accF}:{accF+3}], v{vT+3}, s[{sWS}:{sWS+3}], s{sKV1} offen {P['fp_st']}")
    a.I("s_mov_b64 exec, -1")
    a.label(lbl)
    stamp("fpub")
    a.fence()
    a.I("s_cmp_ge_u32 s2, 36")
    a.I("s_cbranch_scc1 FIN")
    a.I(f"v_lshrrev_b32 v{vT}, 3, v{vTID}")
    a.I(f"v_mul_u32_u24 v{vT}, 4608, v{vT}")
    a.I(f"v_and_b32 v{vT+1}, 7, v{vTID}")
    a.I(f"v_lshl_add_u32 v{vT}, v{vT+1}, 4, v{vT}")
    a.I(f"s_lshl_b32 s{sT0}, s2, 7")
    a.I(f"s_add_u32 s{sT0}, s{sT0}, {WS_FP}")
    for k in range(1, 4):
        a.I(f"s_add_u32 s{sQO+k-1}, s{sT0}, {k*64*4608}")
    a.I(f"s_lshr_b32 s{sT1}, s2, 3")
    a.I(f"s_lshl_b32 s{sT1}, s{sT1}, 7")
    a.I(f"s_bfe_u32 s{sT2}, s2, 0x20001")
    a.I(f"s_lshl_b32 s{sT2}, s{sT2}, 5")
    a.I(f"s_add_u32 s{sT1}, s{sT1}, s{sT2}")
    a.I(f"s_and_b32 s{sT2}, s2, 1")
    a.I(f"s_mul_i32 s{sT2}, s{sT2}, 576")
    a.I(f"s_add_u32 s{sT1}, s{sT1}, s{sT2}")
    a.I(f"s_lshl_b32 s{sGO}, s{sT1}, 1")
    a.I(f"v_lshlrev_b32 v{vT+2}, 1, v{vTID}")
    a.I(f"v_mov_b32 v{vT+3}, {OOB}")
    a.I(f"v_cmp_gt_u32 vcc, 32, v{vTID}")
    a.I(f"v_cndmask_b32 v{vT+2}, v{vT+3}, v{vT+2}, vcc")
    a.I(f"buffer_load_ushort v{vT+7}, v{vT+2}, s[{sX}:{sX+3}], s{sGO} offen")
    so = [sT0, sQO, sQO + 1, sQO + 2]
    F = rA
    a.I(f"v_lshlrev_b32 v{vT+4}, 7, v{vWAVE}")
    a.I(f"v_lshl_add_u32 v{vT+4}, v{vT+1}, 4, v{vT+4}")
    a.I(f"v_bfe_u32 v{vT+5}, v{vLANE}, 3, 2")
    a.I(f"v_lshlrev_b32 v{vT+5}, 2, v{vT+5}")
    a.I(f"v_lshl_add_u32 v{vT+5}, v{vT+1}, 4, v{vT+5}")
    a.I(f"v_cmp_gt_u32 s[{sK}:{sK+1}], 8, v{vLANE}")
    for k in range(4):
        a.I(f"s_mov_b64 s[{sM0+2*k}:{sM0+2*k+1}], -1")
    a.I(f"s_mov_b32 s{sRETRY}, 0")
    def fg_issue():
        for k in range(4):
            a.I(f"s_or_b64 exec, s[{sM0+2*k}:{sM0+2*k+1}], 1")
            a.I(f"buffer_load_dwordx4 v[{F+4*k}:{F+4*k+3}], v{vT}, s[{sWS}:{sWS+3}], s{so[k]} offen {P['fp_ld']}")
    lr, ld = L("FG_TRY"), L("FG_OK")
    if P["fgpipe"]:
        fg_issue()
    a.fence()
    a.label(lr)
    fg_issue()
    a.I(f"s_waitcnt vmcnt({4 if P['fgpipe'] else 0})")
    for k in range(4):
        a.I(f"s_or_b64 exec, s[{sM0+2*k}:{sM0+2*k+1}], 1")
        check(F + 4 * k, vT + 8, vT + 9, sM0 + 2 * k)
    a.I("s_mov_b64 exec, -1")
    a.I(f"s_or_b64 vcc, s[{sM0}:{sM0+1}], s[{sM0+2}:{sM0+3}]")
    a.I(f"s_or_b64 s[{sV}:{sV+1}], s[{sM0+4}:{sM0+5}], s[{sM0+6}:{sM0+7}]")
    a.I(f"s_or_b64 vcc, vcc, s[{sV}:{sV+1}]")
    a.I("s_cmp_eq_u64 vcc, 0")
    a.I(f"s_cbranch_scc1 {ld}")
    if P["fgsleep"]:
        a.I(f"s_sleep {P['fgsleep']}")
    if P["fgadapt"]:
        thr, slp = P["fgadapt"]
        lb = L("FGNB")
        a.I(f"s_bcnt1_i32_b64 s{sT1}, vcc")
        a.I(f"s_cmp_le_u32 s{sT1}, {thr}")
        a.I(f"s_cbranch_scc1 {lb}")
        a.I(f"s_sleep {slp}")
        a.label(lb)
    a.I(f"s_add_u32 s{sRETRY}, s{sRETRY}, 1")
    a.I(f"s_cmp_le_u32 s{sRETRY}, {SPIN_LIMIT}")
    a.I(f"s_cbranch_scc1 {lr}")
    a.label(ld)
    stamp("fg")
    F0 = F
    F = rB
    for c in range(16):
        a.I(f"v_and_b32 v{F+c}, s{sHI}, v{F0+c}")
    for r in range(4):
        a.I(f"v_add_f32 v{F+r}, v{F+r}, v{F+4+r}")
        a.I(f"v_add_f32 v{F+8+r}, v{F+8+r}, v{F+12+r}")
    for r in range(4):
        a.I(f"v_add_f32 v{F+r}, v{F+r}, v{F+8+r}")
    for r in range(4):
        a.I(f"v_add_f32_dpp v{F+r}, v{F+r}, v{F+r} row_ror:8 {DPPM}")
    for r in range(4):
        a.I(f"v_mov_b32 v{F+4+r}, v{F+r}")
    for r in range(4):
        a.I(f"v_permlane16_swap_b32 v{F+r}, v{F+4+r}")
    for r in range(4):
        a.I(f"v_add_f32 v{F+r}, v{F+r}, v{F+4+r}")
    for r in range(4):
        a.I(f"v_mov_b32 v{F+4+r}, v{F+r}")
    for r in range(4):
        a.I(f"v_permlane32_swap_b32 v{F+r}, v{F+4+r}")
    for r in range(4):
        a.I(f"v_add_f32 v{F+r}, v{F+r}, v{F+4+r}")
    a.I(f"s_mov_b64 exec, s[{sK}:{sK+1}]")
    a.I(f"ds_write_b128 v{vT+4}, v[{F}:{F+3}] offset:{L_RZ}")
    a.I("s_mov_b64 exec, -1")
    a.I(f"v_lshlrev_b32 v{vT+7}, 16, v{vT+7}")
    a.I("s_waitcnt lgkmcnt(0)")
    a.I("s_barrier")
    lbl = role("eq", 0)
    for w in range(8):
        a.I(f"ds_read_b32 v{F+w}, v{vT+5} offset:{L_RZ + w*128}")
    a.I("s_waitcnt lgkmcnt(4)")
    a.I(f"v_add_f32 v{F}, v{F}, v{F+1}")
    a.I(f"v_add_f32 v{F+2}, v{F+2}, v{F+3}")
    a.I(f"v_add_f32 v{F}, v{F}, v{vT+7}")
    a.I("s_waitcnt lgkmcnt(0)")
    a.I(f"v_add_f32 v{F+4}, v{F+4}, v{F+5}")
    a.I(f"v_add_f32 v{F+6}, v{F+6}, v{F+7}")
    a.I(f"v_add_f32 v{F}, v{F}, v{F+2}")
    a.I(f"v_add_f32 v{F+4}, v{F+4}, v{F+6}")
    a.I(f"v_add_f32 v{F}, v{F}, v{F+4}")
    a.I(f"v_cvt_pk_bf16_f32 v{F}, v{F}, v{F}")
    a.I(f"buffer_store_short v{F}, v{vT+2}, s[{sOUT}:{sOUT+3}], s{sGO} offen")
    sk = L("NOEP")
    if P.get("selftime"):
        a.I("s_memrealtime s[96:97]")
        a.I("s_waitcnt lgkmcnt(0)")
        a.I("s_sub_u32 s100, s96, s98")
        a.I(f"s_mul_i32 s100, s100, {P['selftime']}")
        lw = L("SELF")
        a.label(lw)
        a.I("s_memrealtime s[88:89]")
        a.I("s_waitcnt lgkmcnt(0)")
        a.I("s_sub_u32 s90, s88, s96")
        a.I("s_cmp_lt_u32 s90, s100")
        a.I(f"s_cbranch_scc1 {lw}")
    a.label(sk)
    a.label(lbl)
    lbl = role("eq", 1)
    a.I("s_cmp_eq_u32 s2, 0")
    a.I(f"s_cbranch_scc0 {lbl}")
    a.I(f"s_add_u32 s{sE}, s{sE}, 1")
    a.I(f"v_mov_b32 v{vT+6}, s{sE}")
    a.I(f"v_mov_b32 v{vT+8}, {WS_EPOCH}")
    a.I(f"v_cmp_eq_u32 vcc, 0, v{vLANE}")
    a.I(f"s_and_saveexec_b64 s[{sM0}:{sM0+1}], vcc")
    a.I(f"buffer_store_dword v{vT+6}, v{vT+8}, s[{sWS}:{sWS+3}], 0 offen {P['ep_st']}")
    a.I(f"s_mov_b64 exec, s[{sM0}:{sM0+1}]")
    a.label(lbl)
    a.label("FIN_S")
    if diag:
        a.I(f"s_add_u32 s{sWAVE}, s{sWAVE}, 4")
    a.I("s_branch FIN2") if diag else None
    a.label("FIN")
    if diag:
        a.I(f"v_lshrrev_b32 v{vT}, 6, v{vTID}") if False else None
    a.label("FIN2")
    if P.get("startdbg"):
        a.I("s_waitcnt lgkmcnt(0)")
        a.I(f"s_load_dwordx2 s[{sDBG}:{sDBG+1}], s[0:1], {OFF['dbg']}")
        a.I(f"s_mov_b32 s{sDBG+2}, 64")
        a.I(f"s_mov_b32 s{sDBG+3}, 0x20000")
        a.I("s_waitcnt lgkmcnt(0)")
        a.I(f"s_lshl_b32 s{sT0}, s2, 2")
        a.I(f"v_mov_b32 v{vT}, s98")
        a.I(f"v_mov_b32 v{vT+1}, 0")
        a.I(f"v_cmp_eq_u32 vcc, 0, v{vLANE}")
        a.I(f"s_and_saveexec_b64 s[{sM0}:{sM0+1}], vcc")
        a.I(f"buffer_store_dword v{vT}, v{vT+1}, s[{sDBG}:{sDBG+3}], s{sT0} offen")
    if diag:
        stamp("end")
        a.I("s_waitcnt lgkmcnt(0)")
        a.fence()
        a.I(f"s_cmp_eq_u32 s19, {stampwave}")
        a.I("s_cbranch_scc0 END")
        for k in range(len(stamps)):
            a.I(f"v_writelane_b32 v{NVGPR-1}, s{STAMP_REGS[k]}, {k}")
        a.I(f"v_writelane_b32 v{NVGPR-1}, s98, 15")
        a.I(f"s_lshl_b32 s{sT0}, s2, 6")
        a.I(f"v_lshlrev_b32 v{vT}, 2, v{vLANE}")
        a.I(f"v_cmp_gt_u32 vcc, 16, v{vLANE}")
        a.I(f"s_and_saveexec_b64 s[{sM0}:{sM0+1}], vcc")
        a.I(f"buffer_store_dword v{NVGPR-1}, v{vT}, s[{sDBG}:{sDBG+3}], s{sT0} offen")
    a.label("END")
    a.I("s_endpgm")
    a.raw('.section .rodata,"a"')
    a.raw(kernel_desc(kn, NVGPR, 102))
    txt = a.text()
    if P["layout"] == "streamfirst":
        i0, i1 = txt.index("; @@SERVICE_BEGIN"), txt.index("; @@SERVICE_END")
        svc = txt[i0:i1]
        txt = txt[:i0] + txt[i1:]
        k = txt.index('.section .rodata,"a"')
        txt = txt[:k] + svc + "CODE_END:\n" + txt[k:]
        txt = txt.replace("(END-PFBASE)", "(CODE_END-PFBASE)")
    if diag:
        txt = txt.replace(f"s_cmp_eq_u32 s19, {stampwave}", f"s_cmp_eq_u32 s3, {stampwave}")
        txt = txt.replace(f"    v_readfirstlane_b32 s{sWAVE}, v{vWAVE}\n", f"    v_readfirstlane_b32 s{sWAVE}, v{vWAVE}\n    v_readfirstlane_b32 s3, v{vWAVE}\n", 1)
    open(path, "w").write(txt)
    print("wrote", path, "insts", a.ninst, "nops", a.nops, "stamps", stamps)


if __name__ == "__main__":
    D = dict(opre=(1, 1, 1, 1), nmid=2, gwait="O1", qflag="K4", qmap="inter", gmap="contig")
    gen("oj_a.s", P=D)
    gen("oj_b.s", P=dict(D, ep_st="sc1"))
```
